```python
import torch

def _softmax(x, axis=-1):
    return torch.softmax(x, dim=axis)
def _gelu(x):
    return torch.nn.functional.gelu(x, approximate="tanh")
def _silu(x):
    return torch.nn.functional.silu(x)
def _sigmoid(x):
    return torch.sigmoid(x)
def _layernorm(x, axis=-1, eps=1e-5):
    m = x.mean(dim=axis, keepdim=True)
    v = x.var(dim=axis, keepdim=True, unbiased=False)
    return (x - m) / torch.sqrt(v + eps)
def _scatter_add(tgt, idx, src, axis=0):
    return tgt.clone().index_add_(axis, idx, src)
def _segment_sum(src, seg, n):
    out = torch.zeros((n,) + src.shape[1:], dtype=src.dtype)
    return out.index_add_(0, seg, src)
def _pad(x, pw):
    flat = tuple(v for pair in reversed(pw) for v in pair)
    return torch.nn.functional.pad(x, flat)

kernel_name = 'sequential_preLN__ssm_conv_s4__glu_gated_swiglu__prompt'

def setup_inputs():

    _w = (lambda a: (lambda t: t.to(torch.bfloat16) if t.is_floating_point() else t)(torch.as_tensor(a)))
    def _A_setup():
        B, L, D, N = 1, 2048, 640, 128
        A_re = -(lambda _x: torch.exp(torch.as_tensor(_x)))((lambda *s: torch.randn(*s, dtype=torch.bfloat16) * 6.4)(D, N))
        A_im = torch.pi * (lambda *s: torch.randn(*s, dtype=torch.bfloat16) * 0.05)(D, N)
        B_re = (lambda *s: torch.randn(*s, dtype=torch.bfloat16) * 0.05)(D, N)
        B_im = (lambda *s: torch.randn(*s, dtype=torch.bfloat16) * 0.05)(D, N)
        C_re = (lambda *s: torch.randn(*s, dtype=torch.bfloat16) * 0.05)(D, N)
        C_im = (lambda *s: torch.randn(*s, dtype=torch.bfloat16) * 0.05)(D, N)
        log_dt = (lambda *s: torch.randn(*s, dtype=torch.bfloat16) * 0.05)(D) * 0.5 - 4.0
        Dskip = (lambda *s: torch.randn(*s, dtype=torch.bfloat16) * 0.05)(D)
        return {
            "u": _w((lambda *s: torch.randn(*s, dtype=torch.bfloat16) * 0.05)(B, L, D)),
            "A_re": _w(A_re),
            "A_im": _w(A_im),
            "B_re": _w(B_re),
            "B_im": _w(B_im),
            "C_re": _w(C_re),
            "C_im": _w(C_im),
            "log_dt": _w(log_dt),
            "Dskip": _w(Dskip),
        }
    _A_in = _A_setup()

    def _B_setup():
        B, S, D, F = 1, 2048, 640, 1728
        return {
            "x": _w((lambda *s: torch.randn(*s, dtype=torch.bfloat16) * 0.05)(B, S, D)),
            "w1": _w((lambda *s: torch.randn(*s, dtype=torch.bfloat16) * 0.4)(D, F) * (2.0 / D) ** 0.5),
            "w3": _w((lambda *s: torch.randn(*s, dtype=torch.bfloat16) * 0.4)(D, F) * (2.0 / D) ** 0.5),
            "w2": _w((lambda *s: torch.randn(*s, dtype=torch.bfloat16) * 0.4)(F, D) * (2.0 / F) ** 0.5),
        }
    _B_in = _B_setup()

    return {
        "A_u": _A_in["u"],
        "A_A_re": _A_in["A_re"],
        "A_A_im": _A_in["A_im"],
        "A_B_re": _A_in["B_re"],
        "A_B_im": _A_in["B_im"],
        "A_C_re": _A_in["C_re"],
        "A_C_im": _A_in["C_im"],
        "A_log_dt": _A_in["log_dt"],
        "A_Dskip": _A_in["Dskip"],
        "B_x": _B_in["x"],
        "B_w1": _B_in["w1"],
        "B_w3": _B_in["w3"],
        "B_w2": _B_in["w2"],
    }

def reference(A_u, A_A_re, A_A_im, A_B_re, A_B_im, A_C_re, A_C_im, A_log_dt, A_Dskip, B_x, B_w1, B_w3, B_w2):
    def _A_ref(u, A_re, A_im, B_re, B_im, C_re, C_im, log_dt, Dskip):
        Bsz, L, D = u.shape
        dt = torch.exp(log_dt)[:, None]
        A = A_re + 1j * A_im
        Bc = B_re + 1j * B_im
        Cc = C_re + 1j * C_im
        logdA = dt * A
        dB = dt * Bc
        l = (lambda x, dt: x.to(dt))(torch.arange(L), A_re.dtype)
        P = torch.exp(logdA[:, :, None] * l[None, None, :])
        K = torch.einsum("dn,dnl,dn->dl", Cc, P, dB).real
        L2 = 2 * L
        Kp = _pad(K, ((0, 0), (0, L)))
        up = (lambda x, *d: x.permute(*d))(u, 0, 2, 1)
        up = _pad(up, ((0, 0), (0, 0), (0, L)))
        Kf = (lambda x, axes=(-2,-1): torch.fft.rfft2(x.float(), dim=axes))(Kp[:, None, :], axes=(-2, -1))
        Uf = (lambda x, axes=(-2,-1): torch.fft.rfft2(x.float(), dim=axes))(up[:, :, None, :], axes=(-2, -1))
        Yf = Uf * Kf[None, :, :, :]
        y = (lambda x, s, axes=(-2,-1): torch.fft.irfft2(x, s=s, dim=axes).to(torch.bfloat16))(Yf, (1, L2), axes=(-2, -1))[:, :, 0, :L]
        y = (lambda x, *d: x.permute(*d))(y, 0, 2, 1) + u * Dskip[None, None, :]
        return y

    def _B_ref(x, w1, w3, w2):
        gate = torch.einsum("bsd,df->bsf", x, w1)
        up = torch.einsum("bsd,df->bsf", x, w3)
        h = _silu(gate) * up
        out = torch.einsum("bsf,fd->bsd", h, w2)
        return out

    x = A_u
    h = x + _A_ref(_layernorm(x, axis=-1), A_A_re, A_A_im, A_B_re, A_B_im, A_C_re, A_C_im, A_log_dt, A_Dskip)
    h2 = h + _B_ref(_layernorm(h, axis=-1), B_w1, B_w3, B_w2)
    return h2
```

```python
import re

TRANS = ("v_exp_f32", "v_log_f32", "v_rcp_f32", "v_rsq_f32", "v_sqrt_f32", "v_sin_f32", "v_cos_f32",
         "v_rcp_iflag_f32")

_REG = re.compile(r"(?<![\w.])(-|\|)?(?:abs\()?([vsa])(?:\[(\d+):(\d+)\]|(\d+))(?![\w])")


def regs_of(op):
    op = op.strip()
    out = set()
    if op in ("vcc", "vcc_lo", "vcc_hi"):
        return {("s", "vcc")}
    if op in ("exec", "exec_lo", "exec_hi"):
        return {("s", "exec")}
    if op == "m0":
        return {("s", "m0")}
    for m in _REG.finditer(op):
        k = m.group(2)
        if m.group(3) is not None:
            out |= {(k, i) for i in range(int(m.group(3)), int(m.group(4)) + 1)}
        else:
            out.add((k, int(m.group(5))))
    return out


def split_ops(rest):
    ops, depth, cur = [], 0, ""
    for ch in rest:
        if ch in "[(":
            depth += 1
        if ch in "])":
            depth -= 1
        if ch == "," and depth == 0:
            ops.append(cur.strip())
            cur = ""
        else:
            cur += ch
    if cur.strip():
        ops.append(cur.strip())
    return ops


class Ins:
    def __init__(self, text):
        self.text = text
        t = text.split(";")[0].strip()
        self.is_label = t.endswith(":")
        self.is_dir = t.startswith(".") or t == ""
        self.mn = ""
        self.reads, self.writes = set(), set()
        self.kind = None
        self.dpp = False
        self.passes = 0
        self.srcC = set()
        self.srcAB = set()
        self.states = 0
        if self.is_label or self.is_dir:
            return
        parts = t.split(None, 1)
        mn = parts[0]
        rest = parts[1] if len(parts) > 1 else ""
        mn = re.sub(r"_(e32|e64|dpp|sdwa)$", "", mn)
        self.mn = mn
        self.states = 1
        ops = split_ops(rest)
        if ops:
            last = ops[-1].split()
            ops[-1] = last[0]
            mods = " ".join(last[1:])
        else:
            mods = ""
        self.mods = mods
        R = [regs_of(o) for o in ops]
        allr = lambda xs: set().union(*xs) if xs else set()
        if mn == "s_nop":
            self.kind = "nop"
            self.states = int(rest.strip(), 0) + 1
        elif mn.startswith("v_mfma"):
            self.kind = "mfma"
            self.passes = 8 if "32x32" in mn else 4
            self.writes = R[0]
            self.srcAB = R[1] | R[2]
            self.srcC = R[3] if len(R) > 3 else set()
            self.reads = self.srcAB | self.srcC
        elif mn.startswith("v_"):
            self.kind = "valu"
            self.dpp = any(k in text for k in ("quad_perm", "row_sh", "row_ro", "wave_sh", "wave_ro", "row_bcast",
                                               "row_newbcast", "row_mirror", "row_half_mirror"))
            if mn.startswith("v_cmp"):
                self.writes = R[0]
                self.reads = allr(R[1:])
            elif mn.startswith("v_permlane") and "swap" in mn:
                self.writes = R[0] | R[1]
                self.reads = R[0] | R[1]
            elif mn.startswith(("v_add_co", "v_sub_co", "v_addc_co", "v_subb_co")):
                self.writes = R[0] | R[1]
                self.reads = allr(R[2:])
            else:
                self.writes = R[0]
                self.reads = allr(R[1:])
                if mn.startswith(("v_fmac", "v_dot2c", "v_pk_fmac", "v_writelane")) or self.dpp:
                    self.reads |= R[0]
                if mn.startswith("v_cndmask") and len(ops) == 3:
                    self.reads.add(("s", "vcc"))
        elif mn.startswith(("buffer_", "global_")):
            self.kind = "vmem"
            is_lds = " lds" in (" " + mods) or "_lds_" in mn
            if "load" in mn and not is_lds:
                self.writes = R[0]
                self.reads = allr(R[1:])
            elif "atomic" in mn:
                self.reads = allr(R)
                if "sc0" in mods:
                    self.writes = R[0] if mn.startswith("buffer_") else R[0]
            else:
                self.reads = allr(R)
            self.is_lds_dma = is_lds
            self.wide_store = ("store" in mn) and (mn.endswith("x4") or mn.endswith("x3"))
            if self.wide_store:
                self.store_data = R[0] if mn.startswith("buffer_") else R[1]
        elif mn.startswith("ds_"):
            self.kind = "ds"
            if mn.startswith(("ds_read", "ds_bpermute", "ds_permute", "ds_swizzle")):
                self.writes = R[0]
                self.reads = allr(R[1:])
            else:
                self.reads = allr(R)
        elif mn.startswith("s_"):
            self.kind = "salu"
            if mn.startswith(("s_cmp", "s_cbranch", "s_branch", "s_waitcnt", "s_barrier", "s_endpgm", "s_sleep",
                              "s_setprio", "s_bitcmp")):
                self.reads = allr(R)
            else:
                self.writes = R[0] if R else set()
                self.reads = allr(R[1:])
                if "saveexec" in mn:
                    self.writes |= {("s", "exec")}
        else:
            raise ValueError("unknown instruction: " + text)

    @property
    def trans(self):
        return self.mn in TRANS


def need(prod, cons):
    n = 0
    vw = {r for r in prod.writes if r[0] in "va"}
    sw = {r for r in prod.writes if r[0] == "s"}
    if prod.kind == "valu" and prod.mn.startswith("v_dot"):
        if cons.kind in ("valu", "mfma", "vmem", "ds") and vw & (cons.reads | cons.writes):
            same_c = cons.mn == prod.mn and not (vw & (cons.reads - cons.writes))
            if not same_c:
                n = max(n, 3)
    if prod.kind == "valu":
        if cons.kind == "mfma" and vw & cons.reads:
            n = max(n, 2)
        if cons.kind == "valu":
            if prod.trans and vw & cons.reads:
                n = max(n, 1)
            if cons.dpp and vw & cons.reads:
                n = max(n, 2)
            if cons.mn.startswith("v_permlane") and vw & cons.reads:
                n = max(n, 2)
            if cons.mn.startswith(("v_readlane", "v_readfirstlane")) and vw & cons.reads:
                n = max(n, 1)
            if sw & cons.reads:
                n = max(n, 4 if cons.mn.startswith(("v_readlane", "v_writelane")) else 2)
            if "op_sel" in prod.text and not prod.mn.startswith("v_pk_") and vw & (cons.reads | cons.writes):
                n = max(n, 1)
            if "dst_sel" in prod.text and vw & (cons.reads | cons.writes):
                n = max(n, 1)
        if cons.kind == "vmem" and sw & cons.reads:
            n = max(n, 5)
        if cons.kind == "salu" and sw & cons.reads:
            n = max(n, 1)
    if prod.kind == "mfma":
        big = 12 if prod.passes == 8 else 8
        ov = 10 if prod.passes == 8 else 6
        if cons.kind == "mfma":
            if vw & cons.srcAB:
                n = max(n, big)
            if vw & cons.srcC and cons.srcC != vw:
                n = max(n, ov)
            if vw & cons.writes and cons.writes != vw:
                n = max(n, ov)
        elif cons.kind in ("valu", "vmem", "ds"):
            if vw & (cons.reads | cons.writes):
                n = max(n, big)
        if cons.kind == "valu" and prod.srcC & cons.writes:
            n = max(n, 7 if prod.passes == 8 else 3)
    if prod.kind == "vmem" and getattr(prod, "wide_store", False):
        if prod.store_data & cons.writes:
            n = max(n, 2 if cons.kind == "valu" else 1)
    if prod.kind == "salu" and ("s", "m0") in prod.writes:
        if cons.kind == "vmem" and getattr(cons, "is_lds_dma", False):
            n = max(n, 1)
        if cons.kind == "ds" and "addtid" in cons.mn:
            n = max(n, 1)
    return n


class Prog:
    LOOK = 16

    def __init__(self):
        self.lines = []

    def __call__(self, text):
        for ln in text.splitlines():
            ln = ln.strip()
            if ln:
                self.lines.append(ln)
        return self

    def raw(self, line):
        self.lines.append(line)

    def extend(self, other):
        self.lines.extend(other.lines)

    @staticmethod
    def _pad(hist, ins):
        dist, worst = 0, 0
        for p in reversed(hist):
            if dist >= Prog.LOOK:
                break
            if p.states == 0:
                continue
            k = need(p, ins)
            if k > dist:
                worst = max(worst, k - dist)
            dist += p.states
        return worst

    def finalize(self):
        ins = [Ins(l) for l in self.lines]
        labels = {i.text.split(";")[0].strip()[:-1]: n for n, i in enumerate(ins) if i.is_label}
        pads = [0] * len(ins)

        def history(upto, count=24):
            h = []
            j = upto - 1
            while j >= 0 and len(h) < count:
                if pads[j]:
                    pass
                h.append(ins[j])
                if pads[j]:
                    h.append(Ins(f"s_nop {pads[j]-1}"))
                j -= 1
            h.reverse()
            return h

        for n, i in enumerate(ins):
            if i.states == 0:
                continue
            pads[n] = self._pad(history(n), i)
        for n, i in enumerate(ins):
            if i.kind == "salu" and i.mn.startswith(("s_cbranch", "s_branch")):
                tgt = i.text.split(";")[0].split()[-1]
                if tgt not in labels:
                    continue
                h = history(n + 1)
                j = labels[tgt]
                seen = 0
                while j < len(ins) and seen < Prog.LOOK:
                    x = ins[j]
                    if x.states:
                        extra = self._pad(h, x) - pads[j]
                        if extra > 0:
                            pads[j] += extra
                        if pads[j]:
                            h = h + [Ins(f"s_nop {pads[j]-1}")]
                        h = h + [x]
                        seen += x.states + pads[j]
                        if x.mn in ("s_branch", "s_endpgm"):
                            break
                    j += 1
        out = []
        for n, i in enumerate(ins):
            p = pads[n]
            while p > 0:
                k = min(p, 16)
                out.append(f"    s_nop {k-1}")
                p -= k
            out.append(i.text if (i.is_label or i.is_dir) else "    " + i.text)
        return "\n".join(out) + "\n"


def kernel_text(name, body, vgprs=256, sgprs=102, agprs=0, extra=""):
    acc = (vgprs + 3) // 4 * 4
    nfv = acc + agprs if agprs else vgprs
    return f""".text
.globl {name}
.p2align 8
.type {name},@function
{name}:
{body}
.section .rodata,"a"
.p2align 6
.amdhsa_kernel {name}
  .amdhsa_next_free_vgpr {nfv}
  .amdhsa_next_free_sgpr {sgprs}
  .amdhsa_accum_offset {acc}
  .amdhsa_group_segment_fixed_size 0
  .amdhsa_kernarg_size 128
  .amdhsa_user_sgpr_count 2
  .amdhsa_user_sgpr_kernarg_segment_ptr 1
  .amdhsa_system_sgpr_workgroup_id_x 1
  .amdhsa_float_denorm_mode_32 3
  .amdhsa_float_denorm_mode_16_64 3
{extra}.end_amdhsa_kernel
"""
```

```python
L, D, F, N = 2048, 640, 1728, 128

KA = dict(u=0, A_re=8, A_im=16, B_re=24, B_im=32, C_re=40, C_im=48, log_dt=56, Dskip=64,
          x_unused=72, w1=80, w3=88, w2=96, out=104, dbg=112, ws=120)

WS_UX, SZ_UX = 0x0000000, 160 * 2048 * 16
WS_HQ, SZ_HQ = 0x0600000, 160 * 2048 * 8
WS_HU, SZ_HU = 0x0900000, 64 * 108 * 1024
KROW = 4608
WS_KG, SZ_KG = 0x1000000, 640 * KROW
WS_CS, SZ_CS = 0x1400000, 2 * 1728 * 4
WS_ST, SZ_ST = 0x1410000, 2048 * 8
WS_FL, SZ_FL = 0x1420000, 0x10000
WS_W13, SZ_W13 = 0x1600000, 20 * 108 * 2 * 1024
WS_W2P, SZ_W2P = 0x1B00000, 54 * 40 * 1024
NCS = 4
SZ_CS = NCS * 2 * 1728 * 4

SRD3 = 0x00020000


def srd(p, s, lo, hi, off, size):
    if off:
        p(f"s_add_u32 s{s}, s{lo}, {off}\ns_addc_u32 s{s+1}, s{hi}, 0")
    else:
        p(f"s_mov_b32 s{s}, s{lo}\ns_mov_b32 s{s+1}, s{hi}")
    p(f"s_mov_b32 s{s+2}, {size}\ns_mov_b32 s{s+3}, {SRD3}")


class LdsQueue:
    def __init__(self, p):
        self.p = p
        self.q = []

    def issue(self, text, tag):
        self.p(text)
        self.q.append(tag)

    def need(self, *tags):
        idx = -1
        for t in tags:
            for i, x in enumerate(self.q):
                if x == t:
                    idx = max(idx, i)
        if idx < 0:
            return
        left = len(self.q) - idx - 1
        if left <= 15:
            self.p(f"s_waitcnt lgkmcnt({left})")
            self.q = self.q[idx + 1:]
        else:
            self.p("s_waitcnt lgkmcnt(15)")
            self.q = self.q[-15:]
            self.need(*tags)

    def drain(self):
        if self.q:
            self.p("s_waitcnt lgkmcnt(0)")
            self.q = []


STAMPS = False
WS_STAMP = 0x1F00000
S_STAMP = 64


CYC = False


def stamp(p, k):
    if STAMPS:
        p(f"{'s_memtime' if CYC else 's_memrealtime'} s[{S_STAMP+2*k}:{S_STAMP+2*k+1}]")


def cstamp(p, k):
    if STAMPS:
        p(f"s_memtime s[{S_STAMP+2*k}:{S_STAMP+2*k+1}]")


def stamp_flush(p, n, wave_sgpr, ws_lo, ws_hi, tmpv=200):
    if not STAMPS:
        return
    p("s_waitcnt lgkmcnt(0)")
    p(f"""
    s_add_u32 s96, s{ws_lo}, {WS_STAMP}
    s_addc_u32 s97, s{ws_hi}, 0
    s_mov_b32 s98, 0x100000
    s_mov_b32 s99, {SRD3}
    s_lshl_b32 s95, s2, 4
    s_add_u32 s95, s95, s{wave_sgpr}
    s_lshl_b32 s95, s95, 6
    v_mov_b32 v{tmpv}, s95
    s_mov_b64 exec, 1
    """)
    for k in range(n):
        p(f"v_mov_b32 v{tmpv+1}, s{S_STAMP+2*k}\n"
          f"buffer_store_dword v{tmpv+1}, v{tmpv}, s[96:99], 0 offen offset:{4*k}\ns_waitcnt vmcnt(0)")
    p("s_mov_b64 exec, -1")
```

```python
import common
from asmgen import Prog
from common import *

UXL = 1280
UXL_END = UXL + 32768
UC = UXL_END + 256
UCS, UCC = 8352, 4160
KL = UC + 4 * UCS
KLS = 5184
CONV_LDS = KL + 4 * KLS

ACC = 32
XA, XB, YA, YB = 64, 96, 128, 160
AD, VK = 16, 24


def conv_load_ux(p, srd_ux, s_dq, s_wave, st0, sc=""):
    p(f"""
    v_lshlrev_b32 v2, 4, v1
    s_lshl_b32 s{st0}, s{s_dq}, 15
    s_lshl_b32 s{st0+1}, s{s_wave}, 12
    s_add_u32 s{st0}, s{st0}, s{st0+1}
    s_add_u32 s{st0+1}, s{st0+1}, {UXL}
    """)
    for n in range(4):
        p(f"""
        s_add_u32 m0, s{st0+1}, {n*1024}
        s_nop 0
        buffer_load_dwordx4 v2, s[{srd_ux}:{srd_ux+3}], s{st0} offen {sc} lds
        s_add_u32 s{st0}, s{st0}, 1024
        """)


def conv_zero_pads(p):
    p(f"""
    v_mov_b32 v8, 0
    v_mov_b32 v9, 0
    v_mov_b32 v10, 0
    v_mov_b32 v11, 0
    v_lshlrev_b32 v3, 4, v0
    v_add_u32 v4, {UXL_END - UXL}, v3
    v_cmp_gt_u32 vcc, 80, v0
    v_cndmask_b32 v3, v4, v3, vcc
    v_cmp_gt_u32 vcc, 96, v0
    s_and_saveexec_b64 s[90:91], vcc
    s_cbranch_execz L_cv_nopad_{p.uid}
    ds_write_b128 v3, v[8:11]
    L_cv_nopad_{p.uid}:
    s_mov_b64 exec, s[90:91]
    """)


def conv_build_copies(p, s_wave, st0):
    vR, vWr, T = 3, 4, 8
    p(f"""
    v_lshrrev_b32 v5, 4, v1
    v_bfe_u32 v6, v1, 2, 2
    v_and_b32 v7, 3, v1
    v_lshlrev_b32 v{vR}, 8, v5
    v_lshl_add_u32 v{vR}, v7, 6, v{vR}
    v_lshl_add_u32 v{vR}, v6, 4, v{vR}
    s_and_b32 s{st0}, s{s_wave}, 1
    s_lshr_b32 s{st0+1}, s{s_wave}, 1
    s_lshl_b32 s{st0+2}, s{st0}, 4
    s_lshl_b32 s{st0+3}, s{st0+1}, 10
    s_add_u32 s{st0+2}, s{st0+2}, s{st0+3}
    s_sub_u32 s{st0+2}, {UXL + 16*2048 - 7*4096}, s{st0+2}
    v_sub_u32 v{vR}, s{st0+2}, v{vR}
    v_mul_u32_u24 v{vWr}, {UCS}, v7
    v_lshl_add_u32 v{vWr}, v5, 5, v{vWr}
    v_lshl_add_u32 v{vWr}, v6, 3, v{vWr}
    s_mul_i32 s{st0+2}, s{st0}, {UCC}
    s_lshl_b32 s{st0+3}, s{st0+1}, 7
    s_add_u32 s{st0+2}, s{st0+2}, s{st0+3}
    s_add_u32 s{st0+2}, s{st0+2}, {UC}
    v_add_u32 v{vWr}, s{st0+2}, v{vWr}
    """)
    for n in range(8):
        p(f"ds_read_b64_tr_b16 v[{T+2*n}:{T+2*n+1}], v{vR} offset:{4096*(7-n)}")
    p(f"""
    v_subrev_u32 v5, 4096, v{vR}
    s_cmp_lt_u32 s{s_wave}, 2
    s_cbranch_scc0 L_cv_nolast_{p.uid}
    ds_read_b64_tr_b16 v[{T+16}:{T+17}], v5
    s_waitcnt lgkmcnt(0)
    s_mov_b32 exec_hi, 0
    ds_write_b64 v{vWr}, v[{T+16}:{T+17}] offset:{512*8}
    s_mov_b64 exec, -1
    L_cv_nolast_{p.uid}:
    """)
    p("s_waitcnt lgkmcnt(0)")
    for n in range(8):
        p(f"ds_write_b64 v{vWr}, v[{T+2*n}:{T+2*n+1}] offset:{512*n}")


def reads_class(A, B, odd):
    o = 16 if odd else 0
    r = []
    for n in range(8):
        a = A + 4 * n
        r.append(f"ds_read_b128 v[{B+4*n}:{B+4*n+3}], v{VK} offset:{512*n + (64 if odd else 0)}")
        r.append(f"ds_read2_b32 v[{a}:{a+1}], v{AD+n} offset0:{o} offset1:{o+1}")
        r.append(f"ds_read2_b32 v[{a+2}:{a+3}], v{AD+n} offset0:{o+2} offset1:{o+3}")
    return r


def mfmas_class(A, B):
    out = []
    for m in range(8):
        for nu in range(8):
            for io in range(8):
                if max(nu, io) == m and nu + io <= 7:
                    c = ACC + 4 * (nu + io)
                    out.append(f"v_mfma_f32_16x16x32_bf16 v[{c}:{c+3}], v[{A+4*nu}:{A+4*nu+3}], "
                               f"v[{B+4*io}:{B+4*io+3}], v[{c}:{c+3}]")
    return out


def mix(p, mf, rd, extra=()):
    rd = list(rd) + list(extra)
    i = 0
    for m in mf:
        p(m)
        if i < len(rd):
            p(rd[i]); i += 1
    while i < len(rd):
        p(rd[i]); i += 1


def conv_main(p, s_ch, st0, tag):
    p(f"""
    v_and_b32 v5, 15, v1
    v_lshrrev_b32 v6, 4, v1
    v_and_b32 v7, 1, v5
    v_mul_u32_u24 v8, {UCC}, v7
    v_add_u32 v9, v5, v7
    v_lshlrev_b32 v9, 1, v9
    v_sub_u32 v8, v8, v9
    v_lshl_add_u32 v8, v6, 4, v8
    s_mul_i32 s{st0}, s{s_ch}, {UCS}
    s_add_u32 s{st0}, s{st0}, {UC + 2*(2048-16) - 448}
    v_add_u32 v{AD}, s{st0}, v8
    """)
    for n in range(1, 8):
        p(f"v_subrev_u32 v{AD+n}, 512, v{AD+n-1}")
    p(f"""
    v_lshlrev_b32 v{VK}, 5, v5
    v_lshl_add_u32 v{VK}, v6, 4, v{VK}
    s_mul_i32 s{st0}, s{s_ch}, {KLS}
    s_add_u32 s{st0}, s{st0}, {KL}
    v_add_u32 v{VK}, s{st0}, v{VK}
    """)
    for r in reads_class(XA, XB, False):
        p(r)
    for r in range(ACC, ACC + 32):
        p(f"v_mov_b32 v{r}, 0")
    p(f"s_mov_b32 s{st0}, 0\nL_cv_loop_{tag}:\ns_waitcnt lgkmcnt(0)")
    mix(p, mfmas_class(XA, XB), reads_class(YA, YB, True))
    adv = [f"v_add_u32 v{AD+n}, 128, v{AD+n}" for n in range(8)] + [f"v_add_u32 v{VK}, 128, v{VK}"]
    for a in adv:
        p(a)
    p("s_waitcnt lgkmcnt(0)")
    mix(p, mfmas_class(YA, YB), reads_class(XA, XB, False))
    p(f"""
    s_add_u32 s{st0}, s{st0}, 1
    s_cmp_lt_u32 s{st0}, 4
    s_cbranch_scc1 L_cv_loop_{tag}
    s_waitcnt lgkmcnt(0)
    """)


def conv_epilogue1(p, s_ch, vD, st0):
    U, T = XA, XB
    p(f"""
    v_and_b32 v5, 15, v1
    v_lshrrev_b32 v6, 4, v1
    v_lshlrev_b32 v7, 5, v5
    v_lshl_add_u32 v7, v6, 3, v7
    s_mul_i32 s{st0}, s{s_ch}, {UCS}
    s_add_u32 s{st0}, s{st0}, {UC + UCC + 504}
    v_sub_u32 v7, s{st0}, v7
    v_lshlrev_b32 v8, 4, v5
    v_lshl_add_u32 v8, v6, 2, v8
    s_mul_i32 s{st0}, s{s_ch}, {KLS}
    s_add_u32 s{st0}, s{st0}, {KL}
    v_add_u32 v8, s{st0}, v8
    """)
    for tau in range(8):
        p(f"ds_read_b64 v[{U+2*tau}:{U+2*tau+1}], v7 offset:{512*(7-tau)}")
    for tau in range(8):
        c, u, t = ACC + 4 * tau, U + 2 * tau, T + 4 * (tau & 1)
        p(f"""
        s_waitcnt lgkmcnt({min(15, 7 - tau + 2*tau)})
        v_and_b32 v{t}, 0xffff0000, v{u+1}
        v_lshlrev_b32 v{t+1}, 16, v{u+1}
        v_and_b32 v{t+2}, 0xffff0000, v{u}
        v_lshlrev_b32 v{t+3}, 16, v{u}
        v_fmac_f32 v{c}, v{t}, v{vD}
        v_fmac_f32 v{c+1}, v{t+1}, v{vD}
        v_fmac_f32 v{c+2}, v{t+2}, v{vD}
        v_fmac_f32 v{c+3}, v{t+3}, v{vD}
        v_cvt_pk_bf16_f32 v{c}, v{c}, v{c+2}
        v_cvt_pk_bf16_f32 v{c+1}, v{c+1}, v{c+3}
        ds_write_b32 v8, v{c} offset:{256*tau}
        ds_write_b32 v8, v{c+1} offset:{2048 + 256*tau}
        """)


def conv_epilogue2(p, srd_hq, s_dq, s_wave, st0):
    E, X, H = 32, 48, 64
    p(f"""
    v_lshrrev_b32 v5, 4, v1
    v_bfe_u32 v6, v1, 2, 2
    v_and_b32 v7, 3, v1
    v_mul_u32_u24 v8, {KLS}, v6
    v_lshl_add_u32 v8, v5, 5, v8
    v_lshl_add_u32 v8, v7, 3, v8
    s_lshl_b32 s{st0}, s{s_wave}, 7
    s_add_u32 s{st0}, s{st0}, {KL}
    v_add_u32 v8, s{st0}, v8
    v_lshlrev_b32 v9, 5, v1
    s_lshl_b32 s{st0}, s{s_wave}, 11
    s_add_u32 s{st0}, s{st0}, {UXL}
    v_add_u32 v9, s{st0}, v9
    v_lshlrev_b32 v10, 4, v1
    s_lshl_b32 s{st0}, s{s_dq}, 14
    s_lshl_b32 s{st0+1}, s{s_wave}, 10
    s_add_u32 s{st0}, s{st0}, s{st0+1}
    v_add_u32 v10, s{st0}, v10
    """)
    for n in range(2):
        e, x = E + 4 * n, X + 4 * n
        p(f"""
        ds_read_b64_tr_b16 v[{e}:{e+1}], v8 offset:{1024*n}
        ds_read_b64_tr_b16 v[{e+2}:{e+3}], v8 offset:{2048 + 1024*n}
        ds_read2_b64 v[{x}:{x+3}], v9 offset0:1 offset1:3
        """)
        if n == 0:
            p("v_add_u32 v11, 16384, v9\nv_mov_b32 v9, v11")
    for n in range(2):
        e, x, h = E + 4 * n, X + 4 * n, H + 12 * n
        p(f"s_waitcnt lgkmcnt({3 if n == 0 else 0})")
        for k in range(4):
            p(f"""
            v_lshlrev_b32 v{h+4}, 16, v{e+k}
            v_and_b32 v{h+5}, 0xffff0000, v{e+k}
            v_lshlrev_b32 v{h+6}, 16, v{x+k}
            v_and_b32 v{h+7}, 0xffff0000, v{x+k}
            v_pk_add_f32 v[{h+4}:{h+5}], v[{h+4}:{h+5}], v[{h+6}:{h+7}]
            v_cvt_pk_bf16_f32 v{h+k}, v{h+4}, v{h+5}
            """)
        p(f"s_movk_i32 s{st0}, {8192*n}\n"
          f"buffer_store_dwordx4 v[{h}:{h+3}], v10, s[{srd_hq}:{srd_hq+3}], s{st0} offen sc1")


def build_conv():
    p = Prog()
    p.uid = "a"
    p(f"""
    s_cmp_ge_u32 s2, 160
    s_cbranch_scc1 L_cv_end
    """)
    stamp(p, 0)
    p(f"""
    s_load_dwordx2 s[6:7], s[0:1], {KA['ws']}
    s_load_dwordx2 s[4:5], s[0:1], {KA['Dskip']}
    v_lshrrev_b32 v2, 6, v0
    v_and_b32 v1, 63, v0
    s_nop 0
    v_readfirstlane_b32 s24, v2
    s_and_b32 s25, s24, 3
    s_waitcnt lgkmcnt(0)
    """)
    srd(p, 8, 6, 7, WS_UX, SZ_UX)
    srd(p, 12, 6, 7, WS_KG, SZ_KG)
    srd(p, 16, 6, 7, WS_HQ, SZ_HQ)
    stamp(p, 1)
    conv_load_ux(p, 8, 2, 24, 30)
    p(f"""
    s_cmp_ge_u32 s24, 4
    s_cbranch_scc1 L_cv_nok
    s_lshl_b32 s27, s2, 2
    s_add_u32 s27, s27, s25
    s_mul_i32 s30, s27, {KROW}
    s_mul_i32 s31, s25, {KLS}
    s_add_u32 s31, s31, {KL}
    """)
    for n in range(5):
        p(f"""
        s_add_u32 m0, s31, {n*1024}
        s_nop 0
        buffer_load_dwordx4 v2, s[12:15], s30 offen lds
        s_add_u32 s30, s30, 1024
        """)
    p(f"""
    s_lshl_b32 s30, s27, 1
    v_mov_b32 v26, s30
    global_load_ushort v30, v26, s[4:5]
    L_cv_nok:
    """)
    conv_zero_pads(p)
    p("s_waitcnt vmcnt(0) lgkmcnt(0)\ns_barrier")
    stamp(p, 2)
    conv_build_copies(p, 24, 30)
    p("s_waitcnt lgkmcnt(0)\ns_barrier")
    stamp(p, 3)
    p("s_cmp_ge_u32 s24, 4\ns_cbranch_scc1 L_cv_idle\nv_lshlrev_b32 v30, 16, v30")
    conv_main(p, 25, 30, "a")
    stamp(p, 4)
    conv_epilogue1(p, 25, 30, 30)
    p("L_cv_idle:\ns_waitcnt lgkmcnt(0)\ns_barrier")
    conv_epilogue2(p, 16, 2, 24, 30)
    if common.STAMPS:
        p("s_waitcnt vmcnt(0)")
        stamp(p, 5)
        stamp_flush(p, 6, 24, 6, 7, tmpv=240)
    p("L_cv_end:\ns_endpgm")
    return p
```

```python
import common
from asmgen import Prog
from common import *

WB = 14 * 1024
HROW = 1152
KS1 = WB + 8 * HROW
STAGE1 = 2 * KS1
NSLOT1 = 3
CSL = NSLOT1 * STAGE1
STL = CSL + 1024
LDS_G1 = STL + 1024

S_HQ, S_W13, S_HU, S_CS, S_ST = 8, 12, 16, 20, 36
S_W, S_MB, S_NB, S_S0, S_SLOT, S_CNT, S_T0, S_T1, S_M, S_KH, S_KW, S_INV = 24, 25, 26, 27, 28, 29, 30, 31, 32, 33, 34, 35

DBG = set()
ACC = 16
XW, XH, YW, YH = 128, 160, 176, 208


def acc(v, m, u):
    idx = (v * 8 + m * 4 + u) if v < 3 else 24 + m * 2 + u
    b = ACC + idx * 4
    return b


def g1_setup(p):
    p(f"""
    s_load_dwordx2 s[6:7], s[0:1], {KA['ws']}
    v_lshrrev_b32 v2, 6, v0
    v_and_b32 v1, 63, v0
    s_and_b32 s{S_T0}, s2, 7
    s_lshr_b32 s{S_T1}, s2, 3
    v_readfirstlane_b32 s{S_W}, v2
    s_lshr_b32 s{S_MB}, s{S_T0}, 2
    s_lshl_b32 s{S_MB}, s{S_MB}, 3
    s_and_b32 s{S_NB}, s{S_T1}, 7
    s_add_u32 s{S_MB}, s{S_MB}, s{S_NB}
    s_and_b32 s{S_NB}, s{S_T0}, 3
    s_lshl_b32 s{S_NB}, s{S_NB}, 2
    s_lshr_b32 s{S_T1}, s{S_T1}, 3
    s_add_u32 s{S_NB}, s{S_NB}, s{S_T1}
    s_mul_i32 s{S_S0}, s{S_NB}, 7
    s_mul_i32 s{S_T0}, s{S_NB}, 6
    s_add_u32 s{S_T0}, s{S_T0}, 12
    s_min_u32 s{S_S0}, s{S_S0}, s{S_T0}
    s_waitcnt lgkmcnt(0)
    """)
    srd(p, S_HQ, 6, 7, WS_HQ, SZ_HQ)
    srd(p, S_W13, 6, 7, WS_W13, SZ_W13)
    srd(p, S_HU, 6, 7, WS_HU, SZ_HU)
    srd(p, S_CS, 6, 7, WS_CS, SZ_CS)
    srd(p, S_ST, 6, 7, WS_ST, SZ_ST)


def g1_issue(p, half):
    items = []
    if half == 0:
        items += [("h", r) for r in range(8)] + [("w", n) for n in range(3)]
    else:
        items += [("w", n) for n in range(3, 14)]
    for kind, n in items:
        if "nodma" in DBG:
            continue
        if kind == "h":
            p(f"""
            s_add_u32 m0, s{S_M}, {WB + n*HROW}
            s_add_u32 s{S_T0}, s{S_KH}, {n*16384}
            buffer_load_dwordx4 v2, s[{S_HQ}:{S_HQ+3}], s{S_T0} offen lds
            """)
        else:
            p(f"""
            s_add_u32 m0, s{S_M}, {n*1024}
            s_add_u32 s{S_T0}, s{S_KW}, {n*1024}
            buffer_load_dwordx4 v3, s[{S_W13}:{S_W13+3}], s{S_T0} offen lds
            """)


def g1_advance(p):
    p(f"""
    s_add_u32 s{S_KH}, s{S_KH}, {2*8*16384}
    s_add_u32 s{S_KW}, s{S_KW}, {2*221184}
    s_add_u32 s{S_M}, s{S_M}, {STAGE1}
    s_sub_u32 s{S_T1}, s{S_M}, {NSLOT1*STAGE1}
    s_cmp_ge_u32 s{S_M}, {NSLOT1*STAGE1}
    s_cselect_b32 s{S_M}, s{S_T1}, s{S_M}
    """)


def g1_loader_half(p, tag, half):
    for s in range(2):
        g1_issue(p, half)
        g1_advance(p)
    p(f"""
    s_mov_b32 s{S_T1}, {hex(STL)}
    s_mov_b32 m0, s{S_T1}
    s_lshl_b32 s{S_T0}, s{S_MB}, 10
    buffer_load_dwordx4 v4, s[{S_ST}:{S_ST+3}], s{S_T0} offen lds
    """)
    for m in range(2):
        for part in range(NCS):
            r = 16 + (m * NCS + part) * 4
            p(f"s_mov_b32 s{S_T0}, {(part*2 + m)*1728*4}\n"
              f"buffer_load_dwordx4 v[{r}:{r+3}], v5, s[{S_CS}:{S_CS+3}], s{S_T0} offen")
    stamp(p, 2)
    p(f"""
    s_waitcnt vmcnt(20)
    s_barrier
    """)
    g1_issue(p, half)
    g1_advance(p)
    p(f"""
    s_waitcnt vmcnt(11)
    s_barrier
    """)
    g1_issue(p, half)
    g1_advance(p)
    for m in range(2):
        b = 16 + m * NCS * 4
        for r in range(4):
            p(f"v_add_f32 v{b+r}, v{b+r}, v{b+4+r}\nv_add_f32 v{b+8+r}, v{b+8+r}, v{b+12+r}\n"
              f"v_add_f32 v{b+r}, v{b+r}, v{b+8+r}")
    p(f"""
    v_lshlrev_b32 v6, 4, v1
    v_add_u32 v6, {CSL}, v6
    s_mov_b64 exec, 0xfffffff
    ds_write_b128 v6, v[16:19]
    ds_write_b128 v6, v[32:35] offset:448
    s_mov_b64 exec, -1
    s_mov_b32 s{S_CNT}, 2
    L_g1_ld{half}_{tag}:
    s_waitcnt vmcnt(11) lgkmcnt(0)
    s_barrier
    """)
    g1_issue(p, half)
    g1_advance(p)
    p(f"""
    s_add_u32 s{S_CNT}, s{S_CNT}, 1
    s_cmp_lt_u32 s{S_CNT}, 8
    s_cbranch_scc1 L_g1_ld{half}_{tag}
    """)
    stamp(p, 3)
    p(f"""
    s_waitcnt vmcnt(11)
    s_barrier
    s_waitcnt vmcnt(0)
    s_barrier
    """)
    stamp(p, 4)


def g1_loader(p, tag):
    p(f"""
    v_lshlrev_b32 v4, 4, v1
    s_lshl_b32 s{S_T0}, s{S_MB}, 10
    v_add_u32 v2, s{S_T0}, v4
    s_lshl_b32 s{S_T0}, s{S_S0}, 11
    v_add_u32 v3, s{S_T0}, v4
    s_lshl_b32 s{S_T0}, s{S_S0}, 6
    v_add_u32 v5, s{S_T0}, v4
    s_sub_u32 s{S_CNT}, s{S_W}, 4
    s_lshr_b32 s{S_T1}, s{S_CNT}, 1
    s_mul_i32 s{S_KH}, s{S_T1}, {8*16384}
    s_mul_i32 s{S_KW}, s{S_T1}, 221184
    s_mul_i32 s{S_M}, s{S_T1}, {KS1}
    s_and_b32 s{S_CNT}, s{S_CNT}, 1
    s_cmp_eq_u32 s{S_CNT}, 0
    s_cbranch_scc0 L_g1_h1_{tag}
    """)
    g1_loader_half(p, tag, 0)
    p(f"s_branch L_g1_ldone_{tag}\nL_g1_h1_{tag}:")
    g1_loader_half(p, tag, 1)
    p(f"L_g1_ldone_{tag}:")


def g1_reads(W, H, kpar, tag):
    o = kpar * KS1
    r = []
    for u in range(4):
        va = "v6" if u < 2 else "v7"
        for hf in range(2):
            r.append((f"ds_read_b64 v[{H+4*u+2*hf}:{H+4*u+2*hf+1}], {va} offset:{o + WB + hf*4*HROW + (u&1)*128}",
                      (tag, "h", u)))
    for v in range(4):
        for m in range(2):
            if v < 3:
                t = f"ds_read_b128 v[{W+8*v+4*m}:{W+8*v+4*m+3}], v8 offset:{o + v*2048 + m*1024}"
            else:
                t = f"ds_read_b128 v[{W+8*v+4*m}:{W+8*v+4*m+3}], v9 offset:{o + 3*2048 + m*1024}"
            r.append((t, (tag, "w", v, m)))
    return r


def g1_mfmas(W, H, tag):
    out = []
    for v in range(4):
        for m in range(2):
            for u in range(4 if v < 3 else 2):
                a = acc(v, m, u)
                out.append((f"v_mfma_f32_16x16x32_bf16 v[{a}:{a+3}], v[{W+8*v+4*m}:{W+8*v+4*m+3}], "
                            f"v[{H+4*u}:{H+4*u+3}], v[{a}:{a+3}]", [(tag, "h", u), (tag, "w", v, m)]))
    return out


def step(p, q, mfmas, reads):
    ri = 0
    if "noread" in DBG:
        for t, tag in reads:
            q.q.append(tag)
        reads = []
    for text, deps in mfmas:
        if "noread" not in DBG:
            q.need(*deps)
        if "nomfma" not in DBG:
            p(text)
        if ri < len(reads):
            q.issue(*reads[ri]); ri += 1
    while ri < len(reads):
        q.issue(*reads[ri]); ri += 1


def g1_addr(p):
    p(f"""
    v_add_u32 v6, s{S_SLOT}, v2
    v_add_u32 v7, s{S_SLOT}, v3
    v_add_u32 v8, s{S_SLOT}, v4
    v_add_u32 v9, s{S_SLOT}, v5
    """)


def g1_next_slot(p):
    p(f"""
    s_add_u32 s{S_SLOT}, s{S_SLOT}, {STAGE1}
    s_sub_u32 s{S_T0}, s{S_SLOT}, {NSLOT1*STAGE1}
    s_cmp_ge_u32 s{S_SLOT}, {NSLOT1*STAGE1}
    s_cselect_b32 s{S_SLOT}, s{S_T0}, s{S_SLOT}
    """)


def g1_consumer(p, tag):
    q = LdsQueue(p)
    p(f"""
    v_lshrrev_b32 v10, 4, v1
    v_and_b32 v11, 15, v1
    v_mul_u32_u24 v2, {HROW}, v10
    v_lshl_add_u32 v2, v11, 3, v2
    s_and_b32 s{S_T0}, s{S_W}, 1
    s_lshl_b32 s{S_T0}, s{S_T0}, 9
    v_add_u32 v2, s{S_T0}, v2
    s_lshr_b32 s{S_T1}, s{S_W}, 1
    s_lshl_b32 s{S_M}, s{S_T1}, 8
    s_sub_u32 s{S_CNT}, 256, s{S_M}
    v_add_u32 v3, s{S_CNT}, v2
    v_add_u32 v2, s{S_M}, v2
    v_lshlrev_b32 v5, 4, v1
    s_lshl_b32 s{S_M}, s{S_T1}, 13
    v_add_u32 v4, s{S_M}, v5
    """)
    for r in range(ACC, ACC + 112):
        p(f"v_mov_b32 v{r}, 0")
    p(f"s_mov_b32 s{S_SLOT}, 0")
    g1_addr(p)
    stamp(p, 2)
    p("s_barrier")
    for r in g1_reads(XW, XH, 0, "x"):
        q.issue(*r)
    entry = list(q.q)
    p(f"s_mov_b32 s{S_CNT}, 0\nL_g1_c_{tag}:")
    step(p, q, g1_mfmas(XW, XH, "x"), g1_reads(YW, YH, 1, "y"))
    ydeps = list(q.q)
    p("s_waitcnt lgkmcnt(0)")
    q.q = []
    g1_next_slot(p)
    p("s_barrier")
    g1_addr(p)
    step(p, q, [(t, []) for t, _ in g1_mfmas(YW, YH, "y")], g1_reads(XW, XH, 0, "x"))
    assert DBG or q.q == entry
    p(f"""
    s_add_u32 s{S_CNT}, s{S_CNT}, 1
    s_cmp_lt_u32 s{S_CNT}, 9
    s_cbranch_scc1 L_g1_c_{tag}
    """)
    stamp(p, 3)
    step(p, q, g1_mfmas(XW, XH, "x"), g1_reads(YW, YH, 1, "y"))
    p("s_waitcnt lgkmcnt(0)")
    q.q = []
    for t, _ in g1_mfmas(YW, YH, "y"):
        p(t)
    stamp(p, 4)
    g1_epilogue(p, tag)


def g1_epilogue(p, tag):
    ST = 128
    R2 = 136
    C = 144
    ONE = 176
    T = 178
    O = 200
    p(f"""
    v_and_b32 v11, 15, v1
    v_lshlrev_b32 v11, 3, v11
    v_add_u32 v11, {STL}, v11
    s_and_b32 s{S_T0}, s{S_W}, 1
    s_lshl_b32 s{S_T0}, s{S_T0}, 9
    v_add_u32 v11, s{S_T0}, v11
    s_lshr_b32 s{S_T1}, s{S_W}, 1
    s_lshl_b32 s{S_M}, s{S_T1}, 8
    s_sub_u32 s{S_CNT}, 256, s{S_M}
    v_add_u32 v7, s{S_CNT}, v11
    v_add_u32 v6, s{S_M}, v11
    v_lshrrev_b32 v10, 4, v1
    v_lshlrev_b32 v10, 4, v10
    v_add_u32 v10, {CSL}, v10
    s_lshl_b32 s{S_M}, s{S_T1}, 8
    v_add_u32 v8, s{S_M}, v10
    """)
    for u in range(4):
        va = "v6" if u < 2 else "v7"
        p(f"ds_read_b64 v[{ST+2*u}:{ST+2*u+1}], {va} offset:{(u&1)*128}")
    for v in range(4):
        for m in range(2):
            r = C + (v * 2 + m) * 4
            if v < 3:
                p(f"ds_read_b128 v[{r}:{r+3}], v8 offset:{m*448 + v*64}")
            else:
                p(f"ds_read_b128 v[{r}:{r+3}], v10 offset:{m*448 + 3*64}")
    p(f"""
    v_lshlrev_b32 v12, 4, v1
    s_and_b32 s{S_T0}, s{S_W}, 1
    s_lshl_b32 s{S_T0}, s{S_T0}, 1
    s_lshl_b32 s{S_M}, s{S_MB}, 2
    s_add_u32 s{S_M}, s{S_M}, s{S_T0}
    s_add_u32 s{S_KH}, s{S_M}, s{S_T1}
    s_sub_u32 s{S_KW}, 1, s{S_T1}
    s_add_u32 s{S_KW}, s{S_KW}, s{S_M}
    s_mul_i32 s{S_KH}, s{S_KH}, 108
    s_mul_i32 s{S_KW}, s{S_KW}, 108
    s_add_u32 s{S_KH}, s{S_KH}, s{S_S0}
    s_add_u32 s{S_KW}, s{S_KW}, s{S_S0}
    s_lshl_b32 s{S_KH}, s{S_KH}, 10
    s_lshl_b32 s{S_KW}, s{S_KW}, 10
    s_lshl_b32 s{S_SLOT}, s{S_T1}, 12
    s_cmp_ge_u32 s{S_NB}, 12
    s_cselect_b32 s{S_INV}, s{S_T1}, 0
    s_lshl_b32 s{S_INV}, s{S_INV}, 30
    v_mov_b32 v{ONE}, 1.0
    v_mov_b32 v{ONE+1}, 1.0
    s_waitcnt lgkmcnt(0)
    """)
    for u in range(4):
        m, r = ST + 2 * u, ST + 2 * u + 1
        p(f"""
        v_mul_f32 v{R2+2*u}, v{r}, v{r}
        v_mul_f32 v{r}, 0xbfb8aa3b, v{r}
        v_sub_f32 v{m}, 0, v{m}
        """)
    for v in range(4):
        if v < 3:
            p(f"s_add_u32 s{S_T0}, s{S_SLOT}, {v*1024}")
        else:
            p(f"s_movk_i32 s{S_T0}, {3*1024}")
        if v == 2:
            p(f"s_add_u32 s{S_T0}, s{S_T0}, s{S_INV}")
        for up in range(2 if v < 3 else 1):
            o = O + 4 * up
            for uu in range(2):
                u = 2 * up + uu
                g, h = acc(v, 0, u), acc(v, 1, u)
                c1, c3 = C + (v * 2) * 4, C + (v * 2 + 1) * 4
                st = ST + 2 * u
                for k in range(2):
                    a, b, z, n = T + 2 * k, T + 4 + 2 * k, T + 8 + 2 * k, T + 12 + 2 * k
                    p(f"""
                    v_pk_fma_f32 v[{a}:{a+1}], v[{c1+2*k}:{c1+2*k+1}], v[{st}:{st+1}], v[{g+2*k}:{g+2*k+1}] op_sel:[0,0,0] op_sel_hi:[1,0,1]
                    v_pk_fma_f32 v[{b}:{b+1}], v[{c3+2*k}:{c3+2*k+1}], v[{st}:{st+1}], v[{h+2*k}:{h+2*k+1}] op_sel:[0,0,0] op_sel_hi:[1,0,1]
                    v_pk_mul_f32 v[{z}:{z+1}], v[{a}:{a+1}], v[{st}:{st+1}] op_sel:[0,1] op_sel_hi:[1,1]
                    v_pk_mul_f32 v[{n}:{n+1}], v[{a}:{a+1}], v[{b}:{b+1}]
                    """)
                for k in range(2):
                    z = T + 8 + 2 * k
                    p(f"v_exp_f32 v{z}, v{z}\nv_exp_f32 v{z+1}, v{z+1}")
                for k in range(2):
                    z, n = T + 8 + 2 * k, T + 12 + 2 * k
                    p(f"""
                    v_pk_mul_f32 v[{n}:{n+1}], v[{n}:{n+1}], v[{R2+2*u}:{R2+2*u+1}] op_sel:[0,0] op_sel_hi:[1,0]
                    v_pk_add_f32 v[{z}:{z+1}], v[{z}:{z+1}], v[{ONE}:{ONE+1}]
                    """)
                for k in range(2):
                    z = T + 8 + 2 * k
                    p(f"v_rcp_f32 v{z}, v{z}\nv_rcp_f32 v{z+1}, v{z+1}")
                for k in range(2):
                    z, n = T + 8 + 2 * k, T + 12 + 2 * k
                    p(f"v_pk_mul_f32 v[{n}:{n+1}], v[{n}:{n+1}], v[{z}:{z+1}]")
                for k in range(2):
                    n = T + 12 + 2 * k
                    p(f"v_cvt_pk_bf16_f32 v{o+2*uu+k}, v{n}, v{n+1}")
            base = S_KH if up == 0 else S_KW
            p(f"""
            s_add_u32 s{S_M}, s{base}, s{S_T0}
            buffer_store_dwordx4 v[{o}:{o+3}], v12, s[{S_HU}:{S_HU+3}], s{S_M} offen sc1
            """)


def build_g1(tag="a"):
    p = Prog()
    p(f"""
    s_cmp_ge_u32 s2, 256
    s_cbranch_scc1 L_g1_end_{tag}
    """)
    stamp(p, 0)
    g1_setup(p)
    stamp(p, 1)
    p(f"""
    s_cmp_ge_u32 s{S_W}, 4
    s_cbranch_scc1 L_g1_loader_{tag}
    """)
    g1_consumer(p, tag)
    p(f"s_branch L_g1_fin_{tag}\nL_g1_loader_{tag}:")
    g1_loader(p, tag)
    p(f"L_g1_fin_{tag}:")
    if common.STAMPS:
        p("s_waitcnt vmcnt(0)")
        stamp(p, 5)
        stamp_flush(p, 6, S_W, 6, 7, tmpv=240)
    p(f"L_g1_end_{tag}:\ns_endpgm")
    return p
```

```python
from asmgen import Prog
import common
from common import *

KS_BYTES = 9216
STAGE = 4 * KS_BYTES
NSLOT = 4
LDS_G2 = NSLOT * STAGE

S_W2, S_HU, S_HQ, S_OUT = 8, 12, 16, 20
S_W, S_TB, S_DB, S_SLOT, S_CNT, S_T0, S_T1, S_KOFF, S_WOFF, S_M = 24, 25, 26, 27, 28, 29, 30, 31, 32, 33


def g2_setup(p):
    p(f"""
    s_load_dwordx2 s[4:5], s[0:1], {KA['w2']}
    s_load_dwordx2 s[6:7], s[0:1], {KA['ws']}
    s_load_dwordx2 s[34:35], s[0:1], {KA['out']}
    v_lshrrev_b32 v2, 6, v0
    v_and_b32 v1, 63, v0
    s_and_b32 s{S_T0}, s2, 7
    s_lshr_b32 s{S_T1}, s2, 3
    v_readfirstlane_b32 s{S_W}, v2
    s_lshr_b32 s{S_TB}, s{S_T0}, 1
    s_lshl_b32 s{S_TB}, s{S_TB}, 3
    s_and_b32 s{S_DB}, s{S_T1}, 7
    s_add_u32 s{S_TB}, s{S_TB}, s{S_DB}
    s_and_b32 s{S_DB}, s{S_T0}, 1
    s_lshl_b32 s{S_DB}, s{S_DB}, 2
    s_lshr_b32 s{S_T1}, s{S_T1}, 3
    s_add_u32 s{S_DB}, s{S_DB}, s{S_T1}
    s_waitcnt lgkmcnt(0)
    """)
    srd(p, S_W2, 6, 7, WS_W2P, SZ_W2P)
    srd(p, S_HU, 6, 7, WS_HU, SZ_HU)
    srd(p, S_HQ, 6, 7, WS_HQ, SZ_HQ)
    srd(p, S_OUT, 34, 35, 0, L * D * 2)


DBG = set()


def g2_issue_kstep(p):
    for b in range(2):
        for a in range(2):
            if "allW" in DBG:
                p(f"s_add_u32 m0, s{S_M}, {(2*b+a)*1024}\ns_nop 0\nbuffer_load_dwordx4 v{3+2*b+a}, s[{S_W2}:{S_W2+3}], s{S_WOFF} offen lds")
                continue
            if "noH" in DBG:
                p(f"s_mov_b32 m0, s{S_M}\ns_movk_i32 s{S_T0}, 0\nbuffer_load_dword v2, s[{S_HU}:{S_HU+3}], s{S_T0} offen lds")
                continue
            p(f"""
            s_add_u32 m0, s{S_M}, {(2*b+a)*1024}
            s_add_u32 s{S_T0}, s{S_KOFF}, {b*108*1024 + a*1024}
            buffer_load_dwordx4 v2, s[{S_HU}:{S_HU+3}], s{S_T0} offen lds
            """)
    for i in range(5):
        if "allH" in DBG:
            p(f"s_add_u32 m0, s{S_M}, {4096 + i*1024}\ns_add_u32 s{S_T0}, s{S_KOFF}, {i*1024}\nbuffer_load_dwordx4 v2, s[{S_HU}:{S_HU+3}], s{S_T0} offen lds")
            continue
        if "noW" in DBG:
            p(f"s_mov_b32 m0, s{S_M}\ns_movk_i32 s{S_T0}, 0\nbuffer_load_dword v2, s[{S_HU}:{S_HU+3}], s{S_T0} offen lds")
            continue
        p(f"""
        s_add_u32 m0, s{S_M}, {4096 + i*1024}
        s_add_u32 s{S_T0}, s{S_WOFF}, {i*1024}
        buffer_load_dwordx4 v3, s[{S_W2}:{S_W2+3}], s{S_T0} offen lds
        """)


def g2_loader(p, tag):
    p(f"""
    s_mul_i32 s{S_T0}, s{S_TB}, {2*108*1024}
    v_lshlrev_b32 v2, 4, v1
    v_add_u32 v2, s{S_T0}, v2
    s_mul_i32 s{S_T0}, s{S_DB}, {5*1024}
    v_lshlrev_b32 v3, 4, v1
    v_add_u32 v3, s{S_T0}, v3
    """)
    p(f"""
    s_sub_u32 s{S_CNT}, s{S_W}, 4
    s_lshl_b32 s{S_KOFF}, s{S_CNT}, 11
    s_mul_i32 s{S_WOFF}, s{S_CNT}, 40960
    s_mul_i32 s{S_SLOT}, s{S_CNT}, {KS_BYTES}
    """)
    for s in range(3):
        p(f"s_add_u32 s{S_M}, s{S_SLOT}, {s*STAGE}")
        g2_issue_kstep(p)
        p(f"s_add_u32 s{S_KOFF}, s{S_KOFF}, {4*2048}\ns_add_u32 s{S_WOFF}, s{S_WOFF}, {4*40960}")
    p(f"""
    s_add_u32 s{S_M}, s{S_SLOT}, {3*STAGE}
    s_mov_b32 s{S_CNT}, 0
    """)
    stamp(p, 2)
    p(f"""
    L_g2_ld_{tag}:
    s_waitcnt vmcnt(18)
    s_barrier
    """)
    g2_issue_kstep(p)
    p(f"""
    s_add_u32 s{S_KOFF}, s{S_KOFF}, {0 if "samek" in DBG else 4*2048}
    s_add_u32 s{S_WOFF}, s{S_WOFF}, {0 if "samek" in DBG else 4*40960}
    s_add_u32 s{S_M}, s{S_M}, {STAGE}
    s_sub_u32 s{S_T0}, s{S_M}, {NSLOT*STAGE}
    s_cmp_ge_u32 s{S_M}, {NSLOT*STAGE}
    s_cselect_b32 s{S_M}, s{S_T0}, s{S_M}
    s_add_u32 s{S_CNT}, s{S_CNT}, 1
    s_cmp_lt_u32 s{S_CNT}, 11
    s_cbranch_scc1 L_g2_ld_{tag}
    """)
    stamp(p, 3)
    stamp(p, 4)
    p(f"""
    s_waitcnt vmcnt(18)
    s_barrier
    s_waitcnt vmcnt(9)
    s_barrier
    s_waitcnt vmcnt(0)
    s_barrier
    s_barrier
    s_barrier
    """)


ACC = 16
XA, XB = 56, 76
YA, YB = 84, 104
RES = 112
TMP = 122


def acc(h, j):
    b = ACC + (h * 5 + j) * 4
    return f"v[{b}:{b+3}]"


def g2_reads(q, A, B, sub, tag):
    o = sub * KS_BYTES
    r = []
    for h in range(2):
        for a in range(2):
            r.append((f"ds_read_b64 v[{B+4*h+2*a}:{B+4*h+2*a+1}], v5 offset:{o + a*1024 + 8*h}", (tag, "B")))
    for j in range(5):
        r.append((f"ds_read_b128 v[{A+4*j}:{A+4*j+3}], v4 offset:{o + 4096 + 1024*j}", (tag, "A", j)))
    return r


def g2_mfmas(A, B):
    return [(f"v_mfma_f32_16x16x32_bf16 {acc(h,j)}, v[{A+4*j}:{A+4*j+3}], v[{B+4*h}:{B+4*h+3}], {acc(h,j)}", j)
            for j in range(5) for h in range(2)]


def interleave(p, q, reads, mfmas, per=1):
    if "nocomp" in DBG:
        return
    ri = 0
    for m, _ in mfmas:
        for _ in range(per):
            if ri < len(reads):
                q.issue(*reads[ri]); ri += 1
        p(m)
    while ri < len(reads):
        q.issue(*reads[ri]); ri += 1


def g2_consumer(p, tag):
    q = LdsQueue(p)
    p(f"""
    v_lshrrev_b32 v6, 4, v1
    v_lshlrev_b32 v2, 4, v1
    s_lshr_b32 s{S_T0}, s{S_W}, 1
    s_mul_i32 s{S_T1}, s{S_T0}, {KS_BYTES}
    v_add_u32 v2, s{S_T1}, v2
    s_and_b32 s{S_CNT}, s{S_W}, 1
    s_lshl_b32 s{S_M}, s{S_CNT}, 11
    s_add_u32 s{S_M}, s{S_M}, s{S_T1}
    v_lshlrev_b32 v3, 4, v1
    v_add_u32 v3, s{S_M}, v3
    """)
    p(f"""
    s_lshl_b32 s{S_M}, s{S_TB}, 6
    s_lshl_b32 s{S_CNT}, s{S_CNT}, 5
    s_add_u32 s{S_M}, s{S_M}, s{S_CNT}
    s_lshl_b32 s{S_T0}, s{S_T0}, 4
    s_add_u32 s{S_M}, s{S_M}, s{S_T0}
    v_and_b32 v9, 15, v1
    v_add_u32 v9, s{S_M}, v9
    s_mul_i32 s{S_T0}, s{S_DB}, 20
    v_add_u32 v10, s{S_T0}, v6
    v_lshlrev_b32 v10, 14, v10
    v_lshl_add_u32 v10, v9, 3, v10
    """)
    for j in range(5):
        p(f"s_mov_b32 s{S_T0}, {j*4*16384}\n"
          f"buffer_load_dwordx2 v[{RES+2*j}:{RES+2*j+1}], v10, s[{S_HQ}:{S_HQ+3}], s{S_T0} offen")
    p(f"""
    s_movk_i32 s{S_T0}, 1280
    v_mul_lo_u32 v11, v9, s{S_T0}
    s_mul_i32 s{S_T0}, s{S_DB}, 160
    v_lshl_add_u32 v11, v6, 3, v11
    v_add_u32 v11, s{S_T0}, v11
    """)
    for r in list(range(ACC, ACC + 40)) + list(range(YA, YA + 28)):
        p(f"v_mov_b32 v{r}, 0")
    p(f"""
    s_mov_b32 s{S_SLOT}, 0
    s_mov_b32 s{S_CNT}, 0
    """)
    stamp(p, 2)
    p(f"""
    L_g2_c_{tag}:
    v_add_u32 v4, s{S_SLOT}, v2
    v_add_u32 v5, s{S_SLOT}, v3
    s_barrier
    """)
    interleave(p, q, g2_reads(q, XA, XB, 0, "x"), g2_mfmas(YA, YB))
    q.p("s_waitcnt lgkmcnt(0)"); q.q = []
    interleave(p, q, g2_reads(q, YA, YB, 2, "y"), g2_mfmas(XA, XB))
    q.drain()
    p(f"""
    s_add_u32 s{S_SLOT}, s{S_SLOT}, {STAGE}
    s_sub_u32 s{S_T0}, s{S_SLOT}, {NSLOT*STAGE}
    s_cmp_ge_u32 s{S_SLOT}, {NSLOT*STAGE}
    s_cselect_b32 s{S_SLOT}, s{S_T0}, s{S_SLOT}
    s_add_u32 s{S_CNT}, s{S_CNT}, 1
    s_cmp_lt_u32 s{S_CNT}, 13
    s_cbranch_scc1 L_g2_c_{tag}
    """)
    stamp(p, 3)
    p(f"""
    v_add_u32 v4, s{S_SLOT}, v2
    v_add_u32 v5, s{S_SLOT}, v3
    s_barrier
    """)
    interleave(p, q, g2_reads(q, XA, XB, 0, "x"), g2_mfmas(YA, YB))
    q.drain()
    for m, _ in g2_mfmas(XA, XB):
        p(m)
    stamp(p, 4)
    p(f"""
    s_barrier
    s_lshr_b32 s{S_T0}, s{S_W}, 1
    s_mul_i32 s{S_T1}, s{S_W}, 5120
    v_lshlrev_b32 v4, 4, v1
    v_add_u32 v5, s{S_T1}, v4
    s_xor_b32 s{S_M}, s{S_W}, 2
    s_mul_i32 s{S_M}, s{S_M}, 5120
    v_add_u32 v4, s{S_M}, v4
    s_cmp_eq_u32 s{S_T0}, 0
    s_cbranch_scc0 L_g2_send0_{tag}
    """)
    for j in range(5):
        p(f"ds_write_b128 v5, {acc(1, j)} offset:{j*1024}")
    p(f"s_branch L_g2_sent_{tag}\nL_g2_send0_{tag}:")
    for j in range(5):
        p(f"ds_write_b128 v5, {acc(0, j)} offset:{j*1024}")
    for j in range(5):
        for r in range(4):
            p(f"v_mov_b32 v{ACC + j*4 + r}, v{ACC + 20 + j*4 + r}")
    p(f"""
    L_g2_sent_{tag}:
    s_waitcnt lgkmcnt(0)
    s_barrier
    """)
    for j in range(5):
        p(f"ds_read_b128 v[{XA+4*j}:{XA+4*j+3}], v4 offset:{j*1024}")
    p("s_waitcnt vmcnt(0) lgkmcnt(0)")
    for j in range(5):
        a, x, t = ACC + 4 * j, XA + 4 * j, TMP
        for r in range(4):
            p(f"v_add_f32 v{a+r}, v{a+r}, v{x+r}")
        p(f"""
        v_cvt_pk_bf16_f32 v{t}, v{a}, v{a+1}
        v_cvt_pk_bf16_f32 v{t+1}, v{a+2}, v{a+3}
        v_lshlrev_b32 v{a}, 16, v{t}
        v_and_b32 v{a+1}, 0xffff0000, v{t}
        v_lshlrev_b32 v{a+2}, 16, v{t+1}
        v_and_b32 v{a+3}, 0xffff0000, v{t+1}
        v_lshlrev_b32 v{t}, 16, v{RES+2*j}
        v_and_b32 v{t+1}, 0xffff0000, v{RES+2*j}
        v_lshlrev_b32 v{t+2}, 16, v{RES+2*j+1}
        v_and_b32 v{t+3}, 0xffff0000, v{RES+2*j+1}
        v_add_f32 v{a}, v{a}, v{t}
        v_add_f32 v{a+1}, v{a+1}, v{t+1}
        v_add_f32 v{a+2}, v{a+2}, v{t+2}
        v_add_f32 v{a+3}, v{a+3}, v{t+3}
        v_cvt_pk_bf16_f32 v{RES+2*j}, v{a}, v{a+1}
        v_cvt_pk_bf16_f32 v{RES+2*j+1}, v{a+2}, v{a+3}
        buffer_store_dwordx2 v[{RES+2*j}:{RES+2*j+1}], v11, s[{S_OUT}:{S_OUT+3}], 0 offen offset:{32*j}
        """)


def build_g2(tag="a"):
    p = Prog()
    p(f"""
    s_cmp_ge_u32 s2, 256
    s_cbranch_scc1 L_g2_end_{tag}
    """)
    stamp(p, 0)
    cstamp(p, 6)
    g2_setup(p)
    stamp(p, 1)
    p(f"""
    s_cmp_ge_u32 s{S_W}, 4
    s_cbranch_scc1 L_g2_loader_{tag}
    """)
    g2_consumer(p, tag)
    p(f"s_branch L_g2_fin_{tag}\nL_g2_loader_{tag}:")
    g2_loader(p, tag)
    p(f"L_g2_fin_{tag}:")
    if common.STAMPS:
        p("s_waitcnt vmcnt(0)")
        stamp(p, 5)
        cstamp(p, 7)
        stamp_flush(p, 8, S_W, 6, 7)
    p(f"L_g2_end_{tag}:\ns_endpgm")
    return p
```

```python
from asmgen import Prog
from common import *

TILE = 4352
TAB = 4 * TILE
KG_LDS = 8 * TAB

vPAR = 4
vW, vP1, vP8, vP128, vT, vB, vX0, vX1 = 12, 14, 16, 18, 20, 22, 24, 26
RA = 28
vC, vAddr, vF = 44, 45, 46
SC = 48
DT = 56
FR = 68
EX = 84


def cmul(p, z, x, y):
    p(f"""
    v_pk_mul_f32 v[{vT}:{vT+1}], v[{x}:{x+1}], v[{y}:{y+1}] op_sel:[0,0] op_sel_hi:[0,1]
    v_pk_fma_f32 v[{z}:{z+1}], v[{x}:{x+1}], v[{y}:{y+1}], v[{vT}:{vT+1}] op_sel:[1,1,0] op_sel_hi:[1,0,1] neg_lo:[0,1,0]
    """)


def put(p, z, tile, row, neg):
    c = vC if (row & 1) == 0 else vC + 3
    p(f"v_cvt_pk_bf16_f32 v{c}, v{z}, {'-' if neg else ''}v{z+1}")
    p(f"ds_write_b32 v{vAddr}, v{c} offset:{tile*TILE + row*16}")


def power(p, dst, l, a2, b2):
    t = SC + 4
    lf = {1: None, 8: "0x41000000", 128: "0x43000000"}[l]
    if lf:
        p(f"v_mul_f32 v{t}, {lf}, v{a2}\nv_mul_f32 v{t+1}, {lf}, v{b2}")
    else:
        p(f"v_mov_b32 v{t}, v{a2}\nv_mov_b32 v{t+1}, v{b2}")
    p(f"""
    v_exp_f32 v{t}, v{t}
    v_fract_f32 v{t+1}, v{t+1}
    v_cos_f32 v{dst}, v{t+1}
    v_sin_f32 v{dst+1}, v{t+1}
    v_mul_f32 v{dst}, v{dst}, v{t}
    v_mul_f32 v{dst+1}, v{dst+1}, v{t}
    """)


def kgen_load(p, s_ch_global, s_half, sp0, st0):
    p(f"""
    s_lshl_b32 s{st0}, s{s_ch_global}, 8
    s_lshl_b32 s{st0+1}, s{s_half}, 7
    s_add_u32 s{st0}, s{st0}, s{st0+1}
    v_lshlrev_b32 v2, 1, v1
    v_add_u32 v2, s{st0}, v2
    s_lshl_b32 s{st0}, s{s_ch_global}, 1
    v_mov_b32 v3, s{st0}
    """)
    for k in range(6):
        p(f"global_load_ushort v{vPAR+k}, v2, s[{sp0+2*k}:{sp0+2*k+1}]")
    p(f"global_load_ushort v{vPAR+6}, v3, s[{sp0+12}:{sp0+13}]")


def kgen_tables(p, s_tab, hook=None):
    p(f"""
    v_lshrrev_b32 v{vAddr}, 2, v1
    v_mul_u32_u24 v{vAddr}, 272, v{vAddr}
    v_and_b32 v{vF}, 3, v1
    v_lshl_add_u32 v{vAddr}, v{vF}, 2, v{vAddr}
    v_add_u32 v{vAddr}, s{s_tab}, v{vAddr}
    v_lshrrev_b32 v{vF}, 4, v1
    v_mul_u32_u24 v{vF}, 272, v{vF}
    v_and_b32 v{vC}, 15, v1
    v_lshl_add_u32 v{vF}, v{vC}, 4, v{vF}
    v_add_u32 v{vF}, s{s_tab}, v{vF}
    s_waitcnt vmcnt(0)
    """)
    if hook:
        hook()
    for k in range(7):
        p(f"v_lshlrev_b32 v{vPAR+k}, 16, v{vPAR+k}")
    Are, Aim, Bre, Bim, Cre, Cim, ldt = (vPAR + k for k in range(7))
    t0, t1, dt, a2, b2 = SC, SC + 1, SC + 2, SC + 3, SC + 6
    p(f"""
    v_mul_f32 v{t0}, 0x3fb8aa3b, v{ldt}
    v_mov_b32 v{t1}, 0x3fb8aa3b
    v_fma_f32 v{t1}, v{ldt}, v{t1}, -v{t0}
    v_mov_b32 v{dt}, 0x32a57060
    v_fmac_f32 v{t1}, v{ldt}, v{dt}
    v_exp_f32 v{t0}, v{t0}
    v_mul_f32 v{t1}, 0x3f317218, v{t1}
    v_fma_f32 v{dt}, v{t0}, v{t1}, v{t0}
    v_cvt_pk_bf16_f32 v{dt}, v{dt}, v{dt}
    v_lshlrev_b32 v{dt}, 16, v{dt}
    v_mul_f32 v{Are}, v{dt}, v{Are}
    v_mul_f32 v{Aim}, v{dt}, v{Aim}
    v_mul_f32 v{Bre}, v{dt}, v{Bre}
    v_mul_f32 v{Bim}, v{dt}, v{Bim}
    v_mul_f32 v{a2}, 0x3fb8aa3b, v{Are}
    v_mul_f32 v{b2}, 0x3e22f983, v{Aim}
    v_mul_f32 v{t0}, v{Cim}, v{Bim}
    v_mul_f32 v{t1}, v{Cim}, v{Bre}
    v_fma_f32 v{vW}, v{Cre}, v{Bre}, -v{t0}
    v_fma_f32 v{vW+1}, v{Cre}, v{Bim}, v{t1}
    """)
    power(p, vP1, 1, a2, b2)
    power(p, vP8, 8, a2, b2)
    power(p, vP128, 128, a2, b2)
    bsteps = []
    def bstep(j):
        if j == 0:
            p(f"v_mov_b32 v{vB}, 1.0\nv_mov_b32 v{vB+1}, 0")
        elif j == 1:
            p(f"v_mov_b32 v{vB}, v{vP8}\nv_mov_b32 v{vB+1}, v{vP8+1}")
        else:
            cmul(p, vB, vB, vP8)
        put(p, vB, 0, j, False)
    bj = iter(range(16))
    def nb():
        j = next(bj, None)
        if j is not None:
            bstep(j)
    p(f"v_mov_b32 v{RA}, v{vW}\nv_mov_b32 v{RA+1}, v{vW+1}")
    put(p, RA, 1, 0, True); nb()
    for pi in range(1, 8):
        cmul(p, RA + 2 * pi, RA + 2 * (pi - 1), vP1)
        put(p, RA + 2 * pi, 1, pi, True); nb()
    for pi in range(8):
        cmul(p, RA + 2 * pi, RA + 2 * pi, vP128)
        put(p, RA + 2 * pi, 1, 8 + pi, True); nb()
    for i in range(2):
        for q in range(4):
            cmul(p, RA + 4 * q, RA + 4 * q, vP128)
            put(p, RA + 4 * q, 2, 4 * i + q, True)
    cmul(p, vX0, RA, vP128)
    put(p, vX0, 2, 8, True)
    put(p, vX0, 3, 0, True)
    cmul(p, vX1, RA + 8, vP128)
    put(p, vX1, 3, 1, True)
    for g in range(1, 4):
        cmul(p, vX0, vX0, vP128); put(p, vX0, 3, 4 * g, True)
        cmul(p, vX1, vX1, vP128); put(p, vX1, 3, 4 * g + 1, True)
    for r in (2, 3):
        for g in range(4):
            cmul(p, vX0, vX0, vP128); put(p, vX0, 3, 4 * g + r, True)
    cmul(p, vX0, vX0, vP128)
    put(p, vX0, 2, 9, True)


def kgen_mfma(p):
    for r in range(12):
        p(f"v_mov_b32 v{DT+r}, 0")
    p("s_waitcnt lgkmcnt(0)")
    for ks in range(4):
        for t in range(4):
            p(f"ds_read_b128 v[{FR+4*t}:{FR+4*t+3}], v{vF} offset:{t*TILE + ks*1088}")
        for t in range(1, 4):
            p(f"s_waitcnt lgkmcnt({3-t})")
            d = DT + 4 * (t - 1)
            p(f"v_mfma_f32_16x16x32_bf16 v[{d}:{d+3}], v[{FR+4*t}:{FR+4*t+3}], v[{FR}:{FR+3}], v[{d}:{d+3}]")


def kgen_send(p, s_tab):
    p(f"v_lshlrev_b32 v{vC}, 4, v1\nv_add_u32 v{vC}, s{s_tab}, v{vC}")
    for t in range(3):
        p(f"ds_write_b128 v{vC}, v[{DT+4*t}:{DT+4*t+3}] offset:{t*1024}")
    p("s_waitcnt lgkmcnt(0)")


def kgen_expand(p, s_partner, emit, st0):
    p(f"v_lshlrev_b32 v{vC}, 4, v1\nv_add_u32 v{vC}, s{s_partner}, v{vC}")
    for t in range(3):
        p(f"ds_read_b128 v[{FR+4*t}:{FR+4*t+3}], v{vC} offset:{t*1024}")
    p("s_waitcnt lgkmcnt(0)")
    for r in range(12):
        p(f"v_add_f32 v{DT+r}, v{DT+r}, v{FR+r}")
    T0, T1, T2 = DT, DT + 4, DT + 8
    E = EX
    p(f"v_cvt_pk_bf16_f32 v{E}, v{T0}, v{T0+1}\nv_cvt_pk_bf16_f32 v{E+1}, v{T0+2}, v{T0+3}")
    emit("s0", E)
    n = E + 16
    E = EX + 4
    p(f"""
    v_mov_b32 v{n}, 0
    v_mov_b32_dpp v{n}, v{T1} wave_shl:1 row_mask:0xf bank_mask:0xf
    v_cvt_pk_bf16_f32 v{E}, v{T1}, v{T1}
    v_cvt_pk_bf16_f32 v{E+1}, v{T1+1}, v{T1+2}
    v_cvt_pk_bf16_f32 v{E+2}, v{T1+2}, v{T1+2}
    v_cvt_pk_bf16_f32 v{E+3}, v{T1+3}, v{n}
    """)
    emit("s1", E)
    E = EX + 8
    p(f"""
    v_readlane_b32 s{st0}, v{T2+2}, 0
    v_mov_b32 v{n}, s{st0}
    v_mov_b32_dpp v{n}, v{T2} wave_shl:1 row_mask:0xf bank_mask:0xf
    v_cvt_pk_bf16_f32 v{E}, v{T2}, v{T2}
    v_cvt_pk_bf16_f32 v{E+1}, v{T2}, v{T2+1}
    v_cvt_pk_bf16_f32 v{E+2}, v{T2+1}, v{T2+1}
    v_cvt_pk_bf16_f32 v{E+3}, v{n}, v{n}
    """)
    emit("s2", E)
    p(f"v_and_b32 v{n+1}, 1, v1\nv_cmp_eq_u32 vcc, 0, v{n+1}")
    for k, (src, nreg, nlane) in enumerate(((T2 + 2, T2 + 3, 0), (T2 + 3, T1 + 1, 32))):
        E = EX + 12 if k == 0 else EX
        p(f"""
        v_readlane_b32 s{st0}, v{nreg}, {nlane}
        v_mov_b32 v{n}, s{st0}
        v_mov_b32_dpp v{n}, v{src} wave_shl:1 row_mask:0xf bank_mask:0xf
        v_cvt_pk_bf16_f32 v{E}, v{src}, v{src}
        v_cndmask_b32 v{n+1}, v{n}, v{src}, vcc
        v_mov_b32 v{E+1}, v{E}
        v_cvt_pk_bf16_f32 v{E+2}, v{n+1}, v{n}
        v_cvt_pk_bf16_f32 v{E+3}, v{n}, v{n}
        """)
        emit("s3a" if k == 0 else "s3b", E)


def build_kgen():
    p = Prog()
    p(f"""
    s_cmp_ge_u32 s2, 160
    s_cbranch_scc1 L_kg_end
    s_load_dwordx4 s[40:43], s[0:1], {KA['A_re']}
    s_load_dwordx4 s[44:47], s[0:1], {KA['B_re']}
    s_load_dwordx4 s[48:51], s[0:1], {KA['C_re']}
    s_load_dwordx2 s[52:53], s[0:1], {KA['log_dt']}
    s_load_dwordx2 s[6:7], s[0:1], {KA['ws']}
    v_lshrrev_b32 v2, 6, v0
    v_and_b32 v1, 63, v0
    s_nop 0
    v_readfirstlane_b32 s24, v2
    s_and_b32 s25, s24, 3
    s_lshr_b32 s26, s24, 2
    s_lshl_b32 s27, s2, 2
    s_add_u32 s27, s27, s25
    s_mul_i32 s28, s24, {TAB}
    s_waitcnt lgkmcnt(0)
    """)
    srd(p, 8, 6, 7, WS_KG, SZ_KG)
    kgen_load(p, 27, 26, 40, 30)
    kgen_tables(p, 28)
    kgen_mfma(p)
    p("s_cmp_eq_u32 s26, 0\ns_cbranch_scc1 L_kg_h0")
    kgen_send(p, 28)
    p("s_barrier\ns_branch L_kg_end\nL_kg_h0:\ns_barrier")
    p(f"""
    s_add_u32 s29, s28, {4*TAB}
    s_mul_i32 s31, s27, {KROW}
    v_lshlrev_b32 v2, 4, v1
    v_add_u32 v2, s31, v2
    v_lshrrev_b32 v3, 5, v1
    v_lshlrev_b32 v3, 8, v3
    v_and_b32 v104, 15, v1
    v_lshl_add_u32 v3, v104, 4, v3
    v_bfe_u32 v104, v1, 4, 1
    v_lshl_add_u32 v3, v104, 3, v3
    v_add_u32 v3, s31, v3
    v_mov_b32 v104, 0
    v_mov_b32 v105, 0
    v_mov_b32 v106, 0
    v_mov_b32 v107, 0
    s_mov_b64 exec, 0x3fffffff
    buffer_store_dwordx4 v[104:107], v2, s[8:11], 0 offen
    s_mov_b64 exec, -1
    """)
    def emit(kind, E):
        if kind == "s0":
            p(f"buffer_store_dwordx2 v[{E}:{E+1}], v3, s[8:11], 0 offen offset:480")
        elif kind == "s1":
            p(f"s_mov_b32 exec_hi, 0\nbuffer_store_dwordx4 v[{E}:{E+3}], v2, s[8:11], 0 offen offset:{480+512}\ns_mov_b64 exec, -1")
        else:
            base = {"s2": 512, "s3a": 1024, "s3b": 1536}[kind]
            p(f"s_movk_i32 s30, {480 + 2*base}\nbuffer_store_dwordx4 v[{E}:{E+3}], v2, s[8:11], s30 offen")
    kgen_expand(p, 29, emit, 32)
    p("L_kg_end:\ns_endpgm")
    return p
```

```python
from asmgen import Prog
from common import *
from stats import finish_stats

DQS = 528
LN_LDS = 160 * DQS


def row16_sum(p, v):
    for n in (1, 2, 4, 8):
        p(f"v_add_f32_dpp v{v}, v{v}, v{v} row_ror:{n} row_mask:0xf bank_mask:0xf")


def ln1_body(p, s_blk, s_wave, srd_x, srd_ux, st0, lds0=0):
    G = 16
    F = 56
    vA, vT, ONES, M, V, MB, RS = 4, 5, 6, 8, 10, 12, 14
    p(f"""
    v_lshrrev_b32 v{vT}, 4, v1
    s_lshl_b32 s{st0}, s{s_blk}, 5
    s_lshl_b32 s{st0+1}, s{s_wave}, 2
    s_add_u32 s{st0}, s{st0}, s{st0+1}
    v_add_u32 v{vT}, s{st0}, v{vT}
    s_movk_i32 s{st0+1}, 1280
    v_mul_lo_u32 v{vA}, v{vT}, s{st0+1}
    v_and_b32 v{vT}, 15, v1
    v_lshl_add_u32 v{vA}, v{vT}, 3, v{vA}
    """)
    for i in range(10):
        p(f"buffer_load_dwordx2 v[{G+4*i+2}:{G+4*i+3}], v{vA}, s[{srd_x}:{srd_x+3}], 0 offen offset:{128*i}")
    p(f"""
    v_mul_u32_u24 v{vA}, {DQS}, v{vT}
    v_lshrrev_b32 v{vT}, 4, v1
    v_lshl_add_u32 v{vA}, v{vT}, 4, v{vA}
    s_lshl_b32 s{st0+1}, s{s_wave}, 6
    s_add_u32 s{st0+1}, s{st0+1}, {lds0}
    v_add_u32 v{vA}, s{st0+1}, v{vA}
    v_mov_b32 v{ONES}, 0x3f803f80
    v_mov_b32 v{M}, 0
    v_mov_b32 v{M+1}, 0
    v_mov_b32 v{V}, 0
    v_mov_b32 v{V+1}, 0
    s_waitcnt vmcnt(0)
    """)
    stamp(p, 2)
    for i in range(10):
        p(f"v_dot2_f32_bf16 v{M}, v{G+4*i+2}, v{ONES}, v{M}")
        p(f"v_dot2_f32_bf16 v{M+1}, v{G+4*i+3}, v{ONES}, v{M+1}")
    for i in range(10):
        for k in range(2):
            r = G + 4 * i + 2 + k
            p(f"v_lshlrev_b32 v{F+4*i+2*k}, 16, v{r}\nv_and_b32 v{F+4*i+2*k+1}, 0xffff0000, v{r}")
    p(f"v_add_f32 v{M}, v{M}, v{M+1}")
    row16_sum(p, M)
    p(f"v_mul_f32 v{M}, 0x3acccccd, v{M}")
    for i in range(20):
        a = F + 2 * i
        p(f"v_pk_add_f32 v[{96}:{97}], v[{a}:{a+1}], v[{M}:{M+1}] op_sel_hi:[1,0] neg_lo:[0,1] neg_hi:[0,1]")
        p(f"v_pk_fma_f32 v[{V}:{V+1}], v[96:97], v[96:97], v[{V}:{V+1}]")
    p(f"v_add_f32 v{V}, v{V}, v{V+1}")
    row16_sum(p, V)
    p(f"v_mul_f32 v{V}, 0x3acccccd, v{V}")
    finish_stats(p, M, V, vT)
    for i in range(10):
        for k in range(2):
            a = F + 4 * i + 2 * k
            p(f"v_pk_add_f32 v[{a}:{a+1}], v[{a}:{a+1}], v[{M}:{M+1}] op_sel_hi:[1,0] neg_lo:[0,1] neg_hi:[0,1]")
            p(f"v_pk_mul_f32 v[{a}:{a+1}], v[{a}:{a+1}], v[{V}:{V+1}] op_sel_hi:[1,0]")
            p(f"v_cvt_pk_bf16_f32 v{G+4*i+k}, v{a}, v{a+1}")
        if i == 5:
            p(f"v_add_u32 v{vA}, {5*16*DQS}, v{vA}")
        p(f"ds_write_b128 v{vA}, v[{G+4*i}:{G+4*i+3}] offset:{(i%5)*16*DQS}")
    p(f"""
    v_lshrrev_b32 v{vT}, 5, v0
    v_mul_u32_u24 v{vA}, {DQS}, v{vT}
    v_and_b32 v{M}, 31, v0
    v_lshl_add_u32 v{vA}, v{M}, 4, v{vA}
    v_add_u32 v{vA}, {lds0}, v{vA}
    v_lshlrev_b32 v{vT}, 15, v{vT}
    v_lshl_add_u32 v{vT}, v{M}, 4, v{vT}
    s_lshl_b32 s{st0}, s{s_blk}, 9
    v_add_u32 v{vT}, s{st0}, v{vT}
    s_waitcnt lgkmcnt(0)
    s_barrier
    """)
    stamp(p, 3)
    p(f"v_add_u32 v{M}, {5*16*DQS}, v{vA}")
    for n in range(10):
        p(f"ds_read_b128 v[{G+4*n}:{G+4*n+3}], v{vA if n < 5 else M} offset:{(n%5)*16*DQS}")
    p(f"s_mov_b32 s{st0}, 0")
    for n in range(10):
        p(f"""
        s_waitcnt lgkmcnt({9-n})
        buffer_store_dwordx4 v[{G+4*n}:{G+4*n+3}], v{vT}, s[{srd_ux}:{srd_ux+3}], s{st0} offen sc1
        s_add_u32 s{st0}, s{st0}, {16*32768}
        """)


def build_ln1():
    p = Prog()
    p(f"""
    s_cmp_ge_u32 s2, 64
    s_cbranch_scc1 L_ln_end
    s_load_dwordx2 s[4:5], s[0:1], {KA['u']}
    s_load_dwordx2 s[6:7], s[0:1], {KA['ws']}
    v_lshrrev_b32 v2, 6, v0
    v_and_b32 v1, 63, v0
    s_nop 0
    v_readfirstlane_b32 s24, v2
    s_waitcnt lgkmcnt(0)
    """)
    srd(p, 8, 4, 5, 0, L * D * 2)
    srd(p, 12, 6, 7, WS_UX, SZ_UX)
    ln1_body(p, 2, 24, 8, 12, 26)
    p("L_ln_end:\ns_endpgm")
    return p
```

```python
from asmgen import Prog
from common import *

NUNITS = 216 + 110
RP_LDS_WAVE = 5 * 4096

R_SRC, R_DST, R_CS = 40, 44, 48
R_U, R_MAT, R_CB, R_KG, R_PITCH, R_T0, R_T1, R_SOFF, R_DOFF, R_DSTR, R_ISW2 = 52, 53, 54, 55, 56, 57, 58, 59, 60, 61, 62


def repack_unit(p, tag, ws_lo, ws_hi, lds_base_sgpr, vb=8):
    vL, vT, vA, vO, vC = vb, vb + 1, vb + 2, vb + 3, vb + 4
    FR = vb + 8
    CSUM = vb + 24
    ONES = vb + 28
    p(f"""
    s_cmp_ge_u32 s{R_U}, 216
    s_cselect_b32 s{R_ISW2}, 1, 0
    s_cbranch_scc1 L_rp_w2_{tag}
    s_lshr_b32 s{R_T0}, s{R_U}, 2
    s_and_b32 s{R_KG}, s{R_U}, 3
    s_cmp_ge_u32 s{R_T0}, 27
    s_cselect_b32 s{R_MAT}, 1, 0
    s_mul_i32 s{R_T1}, s{R_MAT}, 27
    s_sub_u32 s{R_CB}, s{R_T0}, s{R_T1}
    s_cmp_eq_u32 s{R_MAT}, 0
    s_cselect_b32 s{R_SRC}, s80, s82
    s_cselect_b32 s{R_SRC+1}, s81, s83
    s_mov_b32 s{R_SRC+2}, {D*F*2}
    s_mov_b32 s{R_SRC+3}, {SRD3}
    s_movk_i32 s{R_PITCH}, {F*2}
    s_add_u32 s{R_DST}, s{ws_lo}, {WS_W13}
    s_addc_u32 s{R_DST+1}, s{ws_hi}, 0
    s_mov_b32 s{R_DST+2}, {SZ_W13}
    s_mov_b32 s{R_DST+3}, {SRD3}
    s_mul_i32 s{R_DOFF}, s{R_KG}, {5*108*2048}
    s_lshl_b32 s{R_T0}, s{R_CB}, 13
    s_add_u32 s{R_DOFF}, s{R_DOFF}, s{R_T0}
    s_lshl_b32 s{R_T0}, s{R_MAT}, 10
    s_add_u32 s{R_DOFF}, s{R_DOFF}, s{R_T0}
    s_mov_b32 s{R_DSTR}, {108*2048}
    s_branch L_rp_go_{tag}
    L_rp_w2_{tag}:
    s_sub_u32 s{R_T0}, s{R_U}, 216
    s_mul_i32 s{R_CB}, s{R_T0}, 5958
    s_lshr_b32 s{R_CB}, s{R_CB}, 16
    s_mul_i32 s{R_T1}, s{R_CB}, 11
    s_sub_u32 s{R_KG}, s{R_T0}, s{R_T1}
    s_mov_b32 s{R_MAT}, 0
    s_mov_b32 s{R_SRC}, s84
    s_mov_b32 s{R_SRC+1}, s85
    s_mov_b32 s{R_SRC+2}, {D*F*2}
    s_mov_b32 s{R_SRC+3}, {SRD3}
    s_movk_i32 s{R_PITCH}, {D*2}
    s_add_u32 s{R_DST}, s{ws_lo}, {WS_W2P}
    s_addc_u32 s{R_DST+1}, s{ws_hi}, 0
    s_mov_b32 s{R_DST+2}, {SZ_W2P}
    s_mov_b32 s{R_DST+3}, {SRD3}
    s_mul_i32 s{R_DOFF}, s{R_KG}, {5*40*1024}
    s_lshl_b32 s{R_T0}, s{R_CB}, 12
    s_add_u32 s{R_DOFF}, s{R_DOFF}, s{R_T0}
    s_mov_b32 s{R_DSTR}, {40*1024}
    L_rp_go_{tag}:
    """)
    p(f"""
    v_lshrrev_b32 v{vT}, 3, v1
    v_and_b32 v{vA}, 7, v1
    v_and_b32 v{vO}, 6, v{vT}
    v_xor_b32 v{vA}, v{vA}, v{vO}
    v_lshlrev_b32 v{vA}, 4, v{vA}
    v_mul_lo_u32 v{vL}, v{vT}, s{R_PITCH}
    v_add_u32 v{vL}, v{vL}, v{vA}
    s_lshl_b32 s{R_T0}, s{R_CB}, 7
    v_add_u32 v{vL}, s{R_T0}, v{vL}
    s_mul_i32 s{R_SOFF}, s{R_KG}, 160
    s_mul_i32 s{R_SOFF}, s{R_SOFF}, s{R_PITCH}
    s_lshl_b32 s{R_T1}, s{R_PITCH}, 3
    """)
    for n in range(20):
        p(f"""
        s_add_u32 m0, s{lds_base_sgpr}, {n*1024}
        s_nop 0
        buffer_load_dwordx4 v{vL}, s[{R_SRC}:{R_SRC+3}], s{R_SOFF} offen lds
        s_add_u32 s{R_SOFF}, s{R_SOFF}, s{R_T1}
        """)
    p(f"""
    v_lshrrev_b32 v{vT}, 4, v1
    v_bfe_u32 v{vO}, v1, 2, 2
    v_lshl_add_u32 v{vT}, v{vT}, 2, v{vO}
    v_lshrrev_b32 v{vO}, 3, v{vT}
    v_lshlrev_b32 v{vO}, 10, v{vO}
    v_and_b32 v{vC}, 7, v{vT}
    v_lshl_add_u32 v{vO}, v{vC}, 7, v{vO}
    v_and_b32 v{vC}, 1, v1
    v_lshl_add_u32 v{vO}, v{vC}, 3, v{vO}
    v_add_u32 v{vO}, s{lds_base_sgpr}, v{vO}
    v_bfe_u32 v{vC}, v1, 1, 1
    v_and_b32 v{vT}, 6, v{vT}
    """)
    AD = vb + 32
    for j in range(4):
        p(f"""
        v_or_b32 v{vA}, {2*j}, v{vC}
        v_xor_b32 v{vA}, v{vA}, v{vT}
        v_lshl_add_u32 v{AD+j}, v{vA}, 4, v{vO}
        """)
    p(f"""
    v_lshlrev_b32 v{vA}, 4, v1
    v_add_u32 v{vA}, s{R_DOFF}, v{vA}
    v_mov_b32 v{ONES}, 0x3f803f80
    """)
    for j in range(4):
        p(f"v_mov_b32 v{CSUM+j}, 0")
    p(f"s_mov_b32 s{R_SOFF}, 0")
    p(f"""
    s_lshr_b32 s{R_T1}, 2048, s{R_ISW2}
    """)
    p("s_waitcnt vmcnt(0)")
    for t in range(5):
        for j in range(4):
            for s in range(2):
                p(f"ds_read_b64_tr_b16 v[{FR+4*j+2*s}:{FR+4*j+2*s+1}], v{AD+j} offset:{t*4096 + s*2048}")
        p(f"s_mov_b32 s{R_T0}, s{R_SOFF}")
        for j in range(4):
            p(f"s_waitcnt lgkmcnt({6-2*j})")
            p(f"buffer_store_dwordx4 v[{FR+4*j}:{FR+4*j+3}], v{vA}, s[{R_DST}:{R_DST+3}], s{R_T0} offen sc1")
            for r in range(4):
                p(f"v_dot2_f32_bf16 v{CSUM+j}, v{FR+4*j+r}, v{ONES}, v{CSUM+j}")
            p(f"s_add_u32 s{R_T0}, s{R_T0}, s{R_T1}")
        p(f"s_add_u32 s{R_SOFF}, s{R_SOFF}, s{R_DSTR}")
    p(f"""
    s_cmp_eq_u32 s{R_ISW2}, 0
    s_cbranch_scc0 L_rp_done_{tag}
    """)
    for j in range(4):
        c = CSUM + j
        p(f"""
        v_mov_b32 v{vT}, v{c}
        s_nop 1
        v_permlane16_swap_b32 v{c}, v{vT}
        s_nop 1
        v_add_f32 v{c}, v{c}, v{vT}
        v_mov_b32 v{vT}, v{c}
        s_nop 1
        v_permlane32_swap_b32 v{c}, v{vT}
        s_nop 1
        v_add_f32 v{c}, v{c}, v{vT}
        """)
    p(f"""
    v_lshrrev_b32 v{vT}, 4, v1
    v_cmp_eq_u32 vcc, 1, v{vT}
    v_cndmask_b32 v{CSUM}, v{CSUM}, v{CSUM+1}, vcc
    v_cmp_eq_u32 vcc, 2, v{vT}
    v_cndmask_b32 v{CSUM}, v{CSUM}, v{CSUM+2}, vcc
    v_cmp_eq_u32 vcc, 3, v{vT}
    v_cndmask_b32 v{CSUM}, v{CSUM}, v{CSUM+3}, vcc
    s_add_u32 s{R_CS}, s{ws_lo}, {WS_CS}
    s_addc_u32 s{R_CS+1}, s{ws_hi}, 0
    s_mov_b32 s{R_CS+2}, {SZ_CS}
    s_mov_b32 s{R_CS+3}, {SRD3}
    s_mul_i32 s{R_T0}, s{R_KG}, {2*1728*4}
    s_mul_i32 s{R_T1}, s{R_MAT}, {1728*4}
    s_add_u32 s{R_T0}, s{R_T0}, s{R_T1}
    s_lshl_b32 s{R_T1}, s{R_CB}, 8
    s_add_u32 s{R_T0}, s{R_T0}, s{R_T1}
    v_lshlrev_b32 v{vT}, 2, v1
    buffer_store_dword v{CSUM}, v{vT}, s[{R_CS}:{R_CS+3}], s{R_T0} offen sc1
    L_rp_done_{tag}:
    """)


def build_repack():
    p = Prog()
    p(f"""
    s_load_dwordx2 s[80:81], s[0:1], {KA['w1']}
    s_load_dwordx2 s[82:83], s[0:1], {KA['w3']}
    s_load_dwordx2 s[84:85], s[0:1], {KA['w2']}
    s_load_dwordx2 s[6:7], s[0:1], {KA['ws']}
    v_lshrrev_b32 v2, 6, v0
    v_and_b32 v1, 63, v0
    s_nop 0
    v_readfirstlane_b32 s24, v2
    s_lshl_b32 s{R_U}, s2, 3
    s_add_u32 s{R_U}, s{R_U}, s24
    s_mul_i32 s25, s24, {RP_LDS_WAVE}
    s_waitcnt lgkmcnt(0)
    s_cmp_ge_u32 s{R_U}, {NUNITS}
    s_cbranch_scc1 L_rp_end
    """)
    repack_unit(p, "a", 6, 7, 25)
    p("L_rp_end:\ns_endpgm")
    return p
```

```python
from asmgen import Prog
from common import *

def xrow_sum(p, v, t):
    p(f"""
    v_add_f32_dpp v{v}, v{v}, v{v} row_ror:4 row_mask:0xf bank_mask:0xf
    v_add_f32_dpp v{v}, v{v}, v{v} row_ror:8 row_mask:0xf bank_mask:0xf
    v_mov_b32 v{t}, v{v}
    v_permlane16_swap_b32 v{v}, v{t}
    v_add_f32 v{v}, v{v}, v{t}
    v_mov_b32 v{t}, v{v}
    v_permlane32_swap_b32 v{v}, v{t}
    v_add_f32 v{v}, v{v}, v{t}
    """)

def round_bf16(p, dst, src):
    p(f"v_cvt_pk_bf16_f32 v{dst}, v{src}, v{src}\nv_lshlrev_b32 v{dst}, 16, v{dst}")

def finish_stats(p, vm, vv, t):
    round_bf16(p, vm, vm)
    round_bf16(p, vv, vv)
    p(f"v_add_f32 v{vv}, 0x3727c5ac, v{vv}")
    round_bf16(p, vv, vv)
    p(f"v_sqrt_f32 v{vv}, v{vv}")
    round_bf16(p, vv, vv)
    p(f"v_rcp_f32 v{vv}, v{vv}")

def stats8(p, srd_hq, srd_st, s_t0, vb, sc=""):
    X = vb + 8
    vA, vT, ONES = vb, vb + 1, vb + 2
    M0, M1, V0, V1 = vb + 4, vb + 5, vb + 6, vb + 7
    U = vb + 48
    p(f"""
    v_lshrrev_b32 v{vT}, 2, v1
    v_lshlrev_b32 v{vA}, 14, v{vT}
    v_and_b32 v{vT}, 3, v1
    v_lshl_add_u32 v{vA}, v{vT}, 4, v{vA}
    s_lshl_b32 s{s_t0}, s{s_t0}, 3
    v_add_u32 v{vA}, s{s_t0}, v{vA}
    s_mov_b32 s{s_t0+1}, 0
    """)
    for i in range(10):
        p(f"buffer_load_dwordx4 v[{X+4*i}:{X+4*i+3}], v{vA}, s[{srd_hq}:{srd_hq+3}], s{s_t0+1} offen {sc}")
        if i < 9:
            p(f"s_add_u32 s{s_t0+1}, s{s_t0+1}, {16*16384}")
    p(f"""
    v_mov_b32 v{ONES}, 0x3f803f80
    v_mov_b32 v{M0}, 0
    v_mov_b32 v{M1}, 0
    s_waitcnt vmcnt(0)
    """)
    for i in range(10):
        for k in range(2):
            p(f"v_dot2_f32_bf16 v{M0}, v{X+4*i+k}, v{ONES}, v{M0}")
            p(f"v_dot2_f32_bf16 v{M1}, v{X+4*i+2+k}, v{ONES}, v{M1}")
    xrow_sum(p, M0, vT)
    xrow_sum(p, M1, vT)
    p(f"""
    v_mul_f32 v{M0}, {hex(0x3acccccd)}, v{M0}
    v_mul_f32 v{M1}, {hex(0x3acccccd)}, v{M1}
    v_mov_b32 v{V0}, 0
    v_mov_b32 v{V1}, 0
    """)
    for i in range(10):
        for k in range(4):
            m, acc = (M0, V0) if k < 2 else (M1, V1)
            r = X + 4 * i + k
            p(f"""
            v_lshlrev_b32 v{U}, 16, v{r}
            v_and_b32 v{U+1}, 0xffff0000, v{r}
            v_sub_f32 v{U}, v{U}, v{m}
            v_sub_f32 v{U+1}, v{U+1}, v{m}
            v_fmac_f32 v{acc}, v{U}, v{U}
            v_fmac_f32 v{acc}, v{U+1}, v{U+1}
            """)
    xrow_sum(p, V0, vT)
    xrow_sum(p, V1, vT)
    p(f"""
    v_mul_f32 v{V0}, {hex(0x3acccccd)}, v{V0}
    v_mul_f32 v{V1}, {hex(0x3acccccd)}, v{V1}
    """)
    finish_stats(p, M0, V0, vT)
    finish_stats(p, M1, V1, vT)
    p(f"""
    v_mov_b32 v{U}, v{M0}
    v_mov_b32 v{U+1}, v{V0}
    v_mov_b32 v{U+2}, v{M1}
    v_mov_b32 v{U+3}, v{V1}
    v_and_b32 v{vT}, 3, v1
    v_lshlrev_b32 v{vA}, 4, v{vT}
    v_add_u32 v{vA}, s{s_t0}, v{vA}
    s_mov_b64 exec, 0xf
    buffer_store_dwordx4 v[{U}:{U+3}], v{vA}, s[{srd_st}:{srd_st+3}], 0 offen sc1
    s_mov_b64 exec, -1
    """)

def build_stats():
    p = Prog()
    p(f"""
    s_cmp_ge_u32 s2, 256
    s_cbranch_scc1 L_st_end
    s_load_dwordx2 s[6:7], s[0:1], {KA['ws']}
    v_and_b32 v1, 63, v0
    s_waitcnt lgkmcnt(0)
    """)
    srd(p, 8, 6, 7, WS_HQ, SZ_HQ)
    srd(p, 12, 6, 7, WS_ST, SZ_ST)
    p("s_lshl_b32 s16, s2, 3")
    stats8(p, 8, 12, 16, 8)
    p("L_st_end:\ns_endpgm")
    return p
```

```python
import sys
sys.path.insert(0, "work")
import common
from common import *
from asmgen import Prog, kernel_text

HEADER = """; sequential_preLN -> S4 FFT-conv block -> SwiGLU FFN, gfx950.
"""

def empty_kernel():
    p = Prog()
    p("s_endpgm")
    return p

def write(path, kernels):
    hdr = HEADER + "".join(f"; @launch kernel={n} grid=({g},1,1) block=({b},1,1) lds={l}\n" for n, _, g, b, l, _ in kernels)
    seen, body = set(), ""
    for n, prog, g, b, l, v in kernels:
        if n in seen: continue
        seen.add(n)
        body += kernel_text(n, prog.finalize(), vgprs=v)
    open(path, "w").write(hdr + '.amdgcn_target "amdgcn-amd-amdhsa--gfx950"\n' + body)

def multi(extra_empty=0):
    import ln1, kgen, repack, conv, stats, g1, g2
    k = [("ln1_kernel", ln1.build_ln1(), 64, 512, ln1.LN_LDS, 128),
         ("kgen_kernel", kgen.build_kgen(), 160, 512, kgen.KG_LDS, 128),
         ("repack_kernel", repack.build_repack(), 41, 512, 8 * repack.RP_LDS_WAVE, 128),
         ("conv_kernel", conv.build_conv(), 160, 512, conv.CONV_LDS, 256),
         ("stats_kernel", stats.build_stats(), 256, 64, 0, 128),
         ("g1_kernel", g1.build_g1(), 256, 512, g1.LDS_G1, 256),
         ("g2_kernel", g2.build_g2(), 256, 512, g2.LDS_G2, 208)]
    e = empty_kernel()
    for i in range(extra_empty):
        k.insert(3, ("empty_kernel", e, 1, 64, 0, 8))
    return k

if __name__ == "__main__":
    write("v_multi7.s", multi())
    write("v_multi15.s", multi(8))
```

```python
import common
from asmgen import Prog
from common import *
import g1, g2
from stats import finish_stats

G1_CSL = 147456
G1_STL = G1_CSL + 1024
LDS_FFN = G1_STL + 1024
FL_CNT = 0
FL_REL = 128
POLL_MAX = 200000

S_WS = 6
S_OUTP = 92
S_FL = 88


def stats_rows(p, tag):
    X, vA, vT, ONES, M0, M1, V0, V1, U = 200, 196, 197, 198, 192, 193, 194, 195, 212
    T0, T1 = g1.S_T0, g1.S_T1
    p(f"""
    s_lshl_b32 s{T0}, s{g1.S_MB}, 7
    s_lshl_b32 s{T1}, s{g1.S_NB}, 3
    s_add_u32 s{T0}, s{T0}, s{T1}
    s_lshl_b32 s{T1}, s{g1.S_W}, 1
    s_add_u32 s{T0}, s{T0}, s{T1}
    s_lshl_b32 s94, s{T0}, 3
    v_lshlrev_b32 v{vA}, 14, v1
    v_add_u32 v{vA}, s94, v{vA}
    buffer_load_dwordx4 v[{X}:{X+3}], v{vA}, s[{g1.S_HQ}:{g1.S_HQ+3}], 0 offen
    s_mov_b32 s{T1}, {64*16384}
    buffer_load_dwordx4 v[{X+4}:{X+7}], v{vA}, s[{g1.S_HQ}:{g1.S_HQ+3}], s{T1} offen
    s_mov_b32 s{T1}, {128*16384}
    buffer_load_dwordx4 v[{X+8}:{X+11}], v{vA}, s[{g1.S_HQ}:{g1.S_HQ+3}], s{T1} offen
    """)


def wave_sum(p, v, t):
    for n in (1, 2, 4, 8):
        p(f"v_add_f32_dpp v{v}, v{v}, v{v} row_ror:{n} row_mask:0xf bank_mask:0xf")
    p(f"""
    v_mov_b32 v{t}, v{v}
    v_permlane16_swap_b32 v{v}, v{t}
    v_add_f32 v{v}, v{v}, v{t}
    v_mov_b32 v{t}, v{v}
    v_permlane32_swap_b32 v{v}, v{t}
    v_add_f32 v{v}, v{v}, v{t}
    """)


def stats_finish(p, tag):
    X, vA, vT, ONES, M0, M1, V0, V1, U = 200, 196, 197, 198, 192, 193, 194, 195, 212
    p(f"""
    v_mov_b32 v{ONES}, 0x3f803f80
    v_mov_b32 v{M0}, 0
    v_mov_b32 v{M1}, 0
    v_mov_b32 v{V0}, 0
    v_mov_b32 v{V1}, 0
    v_cmp_gt_u32 vcc, 32, v1
    v_cndmask_b32 v{U+4}, 0, 1.0, vcc
    s_waitcnt vmcnt(0)
    """)
    for i in range(3):
        for k in range(2):
            p(f"v_dot2_f32_bf16 v{M0}, v{X+4*i+k}, v{ONES}, v{M0}")
            p(f"v_dot2_f32_bf16 v{M1}, v{X+4*i+2+k}, v{ONES}, v{M1}")
    wave_sum(p, M0, vT)
    wave_sum(p, M1, vT)
    p(f"v_mul_f32 v{M0}, 0x3acccccd, v{M0}\nv_mul_f32 v{M1}, 0x3acccccd, v{M1}")
    for i in range(3):
        for k in range(4):
            m, a = (M0, V0) if k < 2 else (M1, V1)
            r = X + 4 * i + k
            p(f"""
            v_lshlrev_b32 v{U}, 16, v{r}
            v_and_b32 v{U+1}, 0xffff0000, v{r}
            v_sub_f32 v{U}, v{U}, v{m}
            v_sub_f32 v{U+1}, v{U+1}, v{m}
            """)
            if i == 2:
                p(f"v_mul_f32 v{U}, v{U}, v{U+4}\nv_mul_f32 v{U+1}, v{U+1}, v{U+4}")
            p(f"v_fmac_f32 v{a}, v{U}, v{U}\nv_fmac_f32 v{a}, v{U+1}, v{U+1}")
    wave_sum(p, V0, vT)
    wave_sum(p, V1, vT)
    p(f"v_mul_f32 v{V0}, 0x3acccccd, v{V0}\nv_mul_f32 v{V1}, 0x3acccccd, v{V1}")
    finish_stats(p, M0, V0, vT)
    finish_stats(p, M1, V1, vT)
    p(f"""
    v_mov_b32 v{U}, v{M0}
    v_mov_b32 v{U+1}, v{V0}
    v_mov_b32 v{U+2}, v{M1}
    v_mov_b32 v{U+3}, v{V1}
    v_mov_b32 v{vA}, s94
    s_mov_b64 exec, 1
    buffer_store_dwordx4 v[{U}:{U+3}], v{vA}, s[{g1.S_ST}:{g1.S_ST+3}], 0 offen sc1
    s_mov_b64 exec, -1
    """)


def stats_gather(p, tag):
    p(f"""
    s_cmp_eq_u32 s{g1.S_W}, 4
    s_cbranch_scc0 L_sg_done_{tag}
    v_lshlrev_b32 v6, 4, v1
    s_lshl_b32 s{g1.S_T0}, s{g1.S_MB}, 10
    s_mov_b32 s{g1.S_T1}, 0
    L_sg_poll_{tag}:
    buffer_load_dwordx4 v[8:11], v6, s[{g1.S_ST}:{g1.S_ST+3}], s{g1.S_T0} offen sc1
    s_waitcnt vmcnt(0)
    v_cmp_eq_u32 vcc, -1, v9
    v_cmp_eq_u32 s[94:95], -1, v11
    s_or_b64 vcc, vcc, s[94:95]
    s_cmp_eq_u64 vcc, 0
    s_cbranch_scc1 L_sg_ok_{tag}
    s_add_u32 s{g1.S_T1}, s{g1.S_T1}, 1
    s_cmp_lt_u32 s{g1.S_T1}, {POLL_MAX}
    s_cbranch_scc1 L_sg_poll_{tag}
    L_sg_ok_{tag}:
    v_add_u32 v6, {G1_STL}, v6
    ds_write_b128 v6, v[8:11]
    s_waitcnt lgkmcnt(0)
    L_sg_done_{tag}:
    """)


def arrive_and_wait(p, tag, s_mb_arrive, s_mb_wait):
    T0, T1 = 84, 85
    p(f"""
    s_cmp_eq_u32 s{g1.S_W}, 4
    s_cbranch_scc0 L_aw_done_{tag}
    s_lshl_b32 s{T0}, s{s_mb_arrive}, 8
    v_mov_b32 v6, s{T0}
    v_mov_b32 v8, 1
    s_mov_b64 exec, 1
    buffer_atomic_add v8, v6, s[{S_FL}:{S_FL+3}], 0 offen offset:{FL_CNT} sc0 sc1
    s_waitcnt vmcnt(0)
    v_readfirstlane_b32 s{T1}, v8
    s_cmp_eq_u32 s{T1}, 15
    s_cbranch_scc0 L_aw_notlast_{tag}
    v_mov_b32 v8, 1
    buffer_store_dword v8, v6, s[{S_FL}:{S_FL+3}], 0 offen offset:{FL_REL} sc1
    L_aw_notlast_{tag}:
    s_lshl_b32 s{T0}, s{s_mb_wait}, 8
    v_mov_b32 v6, s{T0}
    s_mov_b32 s{T1}, 0
    L_aw_poll_{tag}:
    buffer_load_dword v8, v6, s[{S_FL}:{S_FL+3}], 0 offen offset:{FL_REL} sc1
    s_waitcnt vmcnt(0)
    v_readfirstlane_b32 s94, v8
    s_cmp_lg_u32 s94, 0
    s_cbranch_scc1 L_aw_ok_{tag}
    s_add_u32 s{T1}, s{T1}, 1
    s_cmp_lt_u32 s{T1}, {POLL_MAX}
    s_cbranch_scc1 L_aw_poll_{tag}
    L_aw_ok_{tag}:
    s_mov_b64 exec, -1
    L_aw_done_{tag}:
    """)


def g2_coords(p):
    p(f"""
    s_and_b32 s{g2.S_T0}, s2, 7
    s_lshr_b32 s{g2.S_T1}, s2, 3
    s_lshr_b32 s{g2.S_TB}, s{g2.S_T0}, 1
    s_lshl_b32 s{g2.S_TB}, s{g2.S_TB}, 3
    s_and_b32 s{g2.S_DB}, s{g2.S_T1}, 7
    s_add_u32 s{g2.S_TB}, s{g2.S_TB}, s{g2.S_DB}
    s_and_b32 s{g2.S_DB}, s{g2.S_T0}, 1
    s_lshl_b32 s{g2.S_DB}, s{g2.S_DB}, 2
    s_lshr_b32 s{g2.S_T1}, s{g2.S_T1}, 3
    s_add_u32 s{g2.S_DB}, s{g2.S_DB}, s{g2.S_T1}
    """)


def g2_srds(p):
    srd(p, g2.S_W2, S_WS, S_WS + 1, WS_W2P, SZ_W2P)
    srd(p, g2.S_HU, S_WS, S_WS + 1, WS_HU, SZ_HU)
    srd(p, g2.S_HQ, S_WS, S_WS + 1, WS_HQ, SZ_HQ)
    srd(p, g2.S_OUT, S_OUTP, S_OUTP + 1, 0, L * D * 2)


def g2_issue_w(p):
    for i in range(5):
        p(f"""
        s_add_u32 m0, s{g2.S_M}, {4096 + i*1024}
        s_add_u32 s{g2.S_T0}, s{g2.S_WOFF}, {i*1024}
        buffer_load_dwordx4 v3, s[{g2.S_W2}:{g2.S_W2+3}], s{g2.S_T0} offen lds
        """)


def g2_issue_h(p):
    for b in range(2):
        for a in range(2):
            p(f"""
            s_add_u32 m0, s{g2.S_M}, {(2*b+a)*1024}
            s_add_u32 s{g2.S_T0}, s{g2.S_KOFF}, {b*108*1024 + a*1024}
            buffer_load_dwordx4 v2, s[{g2.S_HU}:{g2.S_HU+3}], s{g2.S_T0} offen sc1 lds
            """)


def ffn_loader_g2(p, tag):
    S_SLOT, S_M, S_KOFF, S_WOFF, S_CNT, S_T0 = g2.S_SLOT, g2.S_M, g2.S_KOFF, g2.S_WOFF, g2.S_CNT, g2.S_T0
    STAGE = g2.STAGE
    p(f"s_mov_b32 s95, s{g1.S_MB}")
    g2_coords(p)
    g2_srds(p)
    p(f"""
    s_mul_i32 s{S_T0}, s{g2.S_TB}, {2*108*1024}
    v_lshlrev_b32 v2, 4, v1
    v_add_u32 v2, s{S_T0}, v2
    s_mul_i32 s{S_T0}, s{g2.S_DB}, {5*1024}
    v_lshlrev_b32 v3, 4, v1
    v_add_u32 v3, s{S_T0}, v3
    s_sub_u32 s{S_CNT}, s{g2.S_W}, 4
    s_lshl_b32 s{S_KOFF}, s{S_CNT}, 11
    s_mul_i32 s{S_WOFF}, s{S_CNT}, 40960
    s_mul_i32 s{S_SLOT}, s{S_CNT}, {g2.KS_BYTES}
    """)
    for s in range(4):
        p(f"s_add_u32 s{S_M}, s{S_SLOT}, {s*STAGE}")
        g2_issue_w(p)
        p(f"s_add_u32 s{S_WOFF}, s{S_WOFF}, {4*40960}")
    stamp(p, 3)
    p("s_barrier")
    p(f"s_lshr_b32 s87, s{g2.S_TB}, 1")
    arrive_and_wait(p, tag, 95, 87)
    p("s_barrier")
    stamp(p, 4)
    for s in range(3):
        p(f"s_add_u32 s{S_M}, s{S_SLOT}, {s*STAGE}")
        g2_issue_h(p)
        p(f"s_add_u32 s{S_KOFF}, s{S_KOFF}, {4*2048}")
    def both():
        g2_issue_h(p)
        g2_issue_w(p)
        adv()
    def adv():
        p(f"""
        s_add_u32 s{S_KOFF}, s{S_KOFF}, {4*2048}
        s_add_u32 s{S_WOFF}, s{S_WOFF}, {4*40960}
        s_add_u32 s{S_M}, s{S_M}, {STAGE}
        s_sub_u32 s{S_T0}, s{S_M}, {g2.NSLOT*STAGE}
        s_cmp_ge_u32 s{S_M}, {g2.NSLOT*STAGE}
        s_cselect_b32 s{S_M}, s{S_T0}, s{S_M}
        """)
    p(f"s_add_u32 s{S_M}, s{S_SLOT}, {3*STAGE}\ns_waitcnt vmcnt(8)\ns_barrier")
    g2_issue_h(p)
    p(f"""
    s_add_u32 s{S_KOFF}, s{S_KOFF}, {4*2048}
    s_mov_b32 s{S_M}, s{S_SLOT}
    s_waitcnt vmcnt(8)
    s_barrier
    """)
    both()
    p("s_waitcnt vmcnt(13)\ns_barrier")
    both()
    p(f"s_mov_b32 s{S_CNT}, 3\nL_ffn_ld2_{tag}:\ns_waitcnt vmcnt(18)\ns_barrier")
    both()
    p(f"""
    s_add_u32 s{S_CNT}, s{S_CNT}, 1
    s_cmp_lt_u32 s{S_CNT}, 11
    s_cbranch_scc1 L_ffn_ld2_{tag}
    s_waitcnt vmcnt(18)
    s_barrier
    s_waitcnt vmcnt(9)
    s_barrier
    s_waitcnt vmcnt(0)
    s_barrier
    s_barrier
    s_barrier
    """)


def build_ffn(tag="f"):
    g1.CSL, g1.STL = G1_CSL, G1_STL
    g1.FUSED = True
    p = Prog()
    p(f"""
    s_cmp_ge_u32 s2, 256
    s_cbranch_scc1 L_ffn_end_{tag}
    """)
    stamp(p, 0)
    p(f"s_load_dwordx2 s[{S_OUTP}:{S_OUTP+1}], s[0:1], {KA['out']}")
    g1.g1_setup(p)
    srd(p, S_FL, S_WS, S_WS + 1, WS_FL, SZ_FL)
    stamp(p, 1)
    p(f"""
    s_cmp_ge_u32 s{g1.S_W}, 4
    s_cbranch_scc1 L_ffn_loader_{tag}
    """)
    stats_rows(p, tag)
    g1.g1_consumer(p, tag, after_init=lambda: stats_finish(p, tag))
    stamp(p, 3)
    p("s_waitcnt vmcnt(0)\ns_barrier")
    g2_coords(p)
    g2_srds(p)
    g2.g2_consumer(p, tag, pre_loop=lambda: p("s_barrier"))
    p(f"s_branch L_ffn_fin_{tag}\nL_ffn_loader_{tag}:")
    g1.g1_loader(p, tag, before_last=lambda: None)
    stats_gather(p, tag)
    p("s_barrier")
    ffn_loader_g2(p, tag)
    p(f"L_ffn_fin_{tag}:")
    if common.STAMPS:
        p("s_waitcnt vmcnt(0)")
        stamp(p, 5)
        stamp_flush(p, 6, g1.S_W, 6, 7, tmpv=240)
    p(f"L_ffn_end_{tag}:\ns_endpgm")
    return p


def init_flags(p, ws_lo, ws_hi, st0, vb=8):
    srd(p, st0, ws_lo, ws_hi, WS_ST, SZ_ST)
    p(f"""
    v_lshlrev_b32 v{vb+4}, 4, v0
    v_mov_b32 v{vb}, -1
    v_mov_b32 v{vb+1}, -1
    v_mov_b32 v{vb+2}, -1
    v_mov_b32 v{vb+3}, -1
    buffer_store_dwordx4 v[{vb}:{vb+3}], v{vb+4}, s[{st0}:{st0+3}], 0 offen sc1
    s_movk_i32 s{st0+4}, 8192
    buffer_store_dwordx4 v[{vb}:{vb+3}], v{vb+4}, s[{st0}:{st0+3}], s{st0+4} offen sc1
    """)
    srd(p, st0 + 8, ws_lo, ws_hi, WS_FL, SZ_FL)
    p(f"""
    v_mov_b32 v{vb+8}, 0
    v_mov_b32 v{vb+9}, 0
    v_mov_b32 v{vb+10}, 0
    v_mov_b32 v{vb+11}, 0
    buffer_store_dwordx4 v[{vb+8}:{vb+11}], v{vb+4}, s[{st0+8}:{st0+11}], 0 offen sc1
    """)
```

```python
import common
from asmgen import Prog
from common import *
import ln1, kgen, conv, repack, ffn

LDS_F1 = max(ln1.LN_LDS, kgen.KG_LDS)
LDS_F2 = max(conv.CONV_LDS, 4 * repack.RP_LDS_WAVE)


def kgen_role(p, s_wgc):
    p(f"""
    s_load_dwordx4 s[40:43], s[0:1], {KA['A_re']}
    s_load_dwordx4 s[44:47], s[0:1], {KA['B_re']}
    s_load_dwordx4 s[48:51], s[0:1], {KA['C_re']}
    s_load_dwordx2 s[52:53], s[0:1], {KA['log_dt']}
    s_and_b32 s25, s24, 3
    s_lshr_b32 s26, s24, 2
    s_lshl_b32 s27, s{s_wgc}, 2
    s_add_u32 s27, s27, s25
    s_mul_i32 s28, s24, {kgen.TAB}
    s_waitcnt lgkmcnt(0)
    """)
    srd(p, 8, 6, 7, WS_KG, SZ_KG)
    kgen.kgen_load(p, 27, 26, 40, 30)
    kgen.kgen_tables(p, 28)
    kgen.kgen_mfma(p)
    p("s_cmp_eq_u32 s26, 0\ns_cbranch_scc1 L_kg_h0")
    kgen.kgen_send(p, 28)
    p("s_barrier\ns_branch L_f1_end\nL_kg_h0:\ns_barrier")
    TAB = kgen.TAB
    p(f"""
    s_add_u32 s29, s28, {4*TAB}
    s_mul_i32 s31, s27, {KROW}
    v_lshlrev_b32 v2, 4, v1
    v_add_u32 v2, s31, v2
    v_lshrrev_b32 v3, 5, v1
    v_lshlrev_b32 v3, 8, v3
    v_and_b32 v104, 15, v1
    v_lshl_add_u32 v3, v104, 4, v3
    v_bfe_u32 v104, v1, 4, 1
    v_lshl_add_u32 v3, v104, 3, v3
    v_add_u32 v3, s31, v3
    v_mov_b32 v104, 0
    v_mov_b32 v105, 0
    v_mov_b32 v106, 0
    v_mov_b32 v107, 0
    s_mov_b64 exec, 0x3fffffff
    buffer_store_dwordx4 v[104:107], v2, s[8:11], 0 offen
    s_mov_b64 exec, -1
    """)
    def emit(kind, E):
        if kind == "s0":
            p(f"buffer_store_dwordx2 v[{E}:{E+1}], v3, s[8:11], 0 offen offset:480")
        elif kind == "s1":
            p(f"s_mov_b32 exec_hi, 0\nbuffer_store_dwordx4 v[{E}:{E+3}], v2, s[8:11], 0 offen offset:{480+512}\ns_mov_b64 exec, -1")
        else:
            base = {"s2": 512, "s3a": 1024, "s3b": 1536}[kind]
            p(f"s_movk_i32 s30, {480 + 2*base}\nbuffer_store_dwordx4 v[{E}:{E+3}], v2, s[8:11], s30 offen")
    kgen.kgen_expand(p, 29, emit, 32)


def build_front1():
    p = Prog()
    p(f"""
    s_cmp_ge_u32 s2, 225
    s_cbranch_scc1 L_f1_end
    s_load_dwordx2 s[6:7], s[0:1], {KA['ws']}
    s_load_dwordx2 s[4:5], s[0:1], {KA['u']}
    v_lshrrev_b32 v2, 6, v0
    v_and_b32 v1, 63, v0
    s_nop 0
    v_readfirstlane_b32 s24, v2
    s_cmp_lt_u32 s2, 64
    s_cbranch_scc1 L_f1_ln
    s_cmp_lt_u32 s2, 224
    s_cbranch_scc1 L_f1_kg
    s_waitcnt lgkmcnt(0)
    """)
    ffn.init_flags(p, 6, 7, 8)
    p("s_branch L_f1_end\nL_f1_ln:\ns_waitcnt lgkmcnt(0)")
    srd(p, 8, 4, 5, 0, L * D * 2)
    srd(p, 12, 6, 7, WS_UX, SZ_UX)
    ln1.ln1_body(p, 2, 24, 8, 12, 26)
    p("s_branch L_f1_end\nL_f1_kg:\ns_sub_u32 s33, s2, 64")
    kgen_role(p, 33)
    p("L_f1_end:\ns_endpgm")
    return p


def build_front2():
    p = Prog()
    p.uid = "a"
    p(f"""
    s_cmp_ge_u32 s2, 256
    s_cbranch_scc1 L_cv_end
    """)
    stamp(p, 0)
    p(f"""
    s_load_dwordx2 s[6:7], s[0:1], {KA['ws']}
    s_load_dwordx2 s[4:5], s[0:1], {KA['Dskip']}
    s_load_dwordx2 s[80:81], s[0:1], {KA['w1']}
    s_load_dwordx2 s[82:83], s[0:1], {KA['w3']}
    s_load_dwordx2 s[84:85], s[0:1], {KA['w2']}
    v_lshrrev_b32 v2, 6, v0
    v_and_b32 v1, 63, v0
    s_nop 0
    v_readfirstlane_b32 s24, v2
    s_cmp_lt_u32 s2, 160
    s_cbranch_scc1 L_f2_conv
    s_cmp_ge_u32 s24, 4
    s_cbranch_scc1 L_cv_end
    s_sub_u32 s25, s2, 160
    s_lshl_b32 s25, s25, 2
    s_add_u32 s{repack.R_U}, s25, s24
    s_mul_i32 s25, s24, {repack.RP_LDS_WAVE}
    s_waitcnt lgkmcnt(0)
    s_cmp_ge_u32 s{repack.R_U}, {repack.NUNITS}
    s_cbranch_scc1 L_cv_end
    """)
    repack.repack_unit(p, "a", 6, 7, 25)
    p("s_branch L_cv_end\nL_f2_conv:\ns_and_b32 s25, s24, 3\ns_waitcnt lgkmcnt(0)")
    srd(p, 8, 6, 7, WS_UX, SZ_UX)
    srd(p, 12, 6, 7, WS_KG, SZ_KG)
    srd(p, 16, 6, 7, WS_HQ, SZ_HQ)
    stamp(p, 1)
    conv.conv_load_ux(p, 8, 2, 24, 30)
    p(f"""
    s_cmp_ge_u32 s24, 4
    s_cbranch_scc1 L_cv_nok
    s_lshl_b32 s27, s2, 2
    s_add_u32 s27, s27, s25
    s_mul_i32 s30, s27, {KROW}
    s_mul_i32 s31, s25, {conv.KLS}
    s_add_u32 s31, s31, {conv.KL}
    """)
    for n in range(5):
        p(f"""
        s_add_u32 m0, s31, {n*1024}
        s_nop 0
        buffer_load_dwordx4 v2, s[12:15], s30 offen lds
        s_add_u32 s30, s30, 1024
        """)
    p(f"""
    s_lshl_b32 s30, s27, 1
    v_mov_b32 v26, s30
    global_load_ushort v30, v26, s[4:5]
    L_cv_nok:
    """)
    conv.conv_zero_pads(p)
    p("s_waitcnt vmcnt(0) lgkmcnt(0)\ns_barrier")
    stamp(p, 2)
    conv.conv_build_copies(p, 24, 30)
    p("s_waitcnt lgkmcnt(0)\ns_barrier")
    stamp(p, 3)
    p("s_cmp_ge_u32 s24, 4\ns_cbranch_scc1 L_cv_idle\nv_lshlrev_b32 v30, 16, v30")
    conv.conv_main(p, 25, 30, "a")
    stamp(p, 4)
    conv.conv_epilogue1(p, 25, 30, 30)
    p("L_cv_idle:\ns_waitcnt lgkmcnt(0)\ns_barrier")
    conv.conv_epilogue2(p, 16, 2, 24, 30)
    p("L_cv_end:\ns_endpgm")
    return p
```

```python
import common
from asmgen import Prog
from common import *

WB = 14 * 1024
HROW = 1152
KS1 = WB + 8 * HROW
STAGE1 = 2 * KS1
NSLOT1 = 3
CSL = NSLOT1 * STAGE1
STL = CSL + 1024
LDS_G1 = STL + 1024

S_HQ, S_W13, S_HU, S_CS, S_ST = 8, 12, 16, 20, 36
S_W, S_MB, S_NB, S_S0, S_SLOT, S_CNT, S_T0, S_T1, S_M, S_KH, S_KW, S_INV = 24, 25, 26, 27, 28, 29, 30, 31, 32, 33, 34, 35

DBG = set()
FUSED = False
ACC = 16
XW, XH, YW, YH = 128, 160, 176, 208


def acc(v, m, u):
    idx = (v * 8 + m * 4 + u) if v < 3 else 24 + m * 2 + u
    b = ACC + idx * 4
    return b


def g1_setup(p):
    p(f"""
    s_load_dwordx2 s[6:7], s[0:1], {KA['ws']}
    v_lshrrev_b32 v2, 6, v0
    v_and_b32 v1, 63, v0
    s_and_b32 s{S_T0}, s2, 7
    s_lshr_b32 s{S_T1}, s2, 3
    v_readfirstlane_b32 s{S_W}, v2
    s_lshr_b32 s{S_MB}, s{S_T0}, 2
    s_lshl_b32 s{S_MB}, s{S_MB}, 3
    s_and_b32 s{S_NB}, s{S_T1}, 7
    s_add_u32 s{S_MB}, s{S_MB}, s{S_NB}
    s_and_b32 s{S_NB}, s{S_T0}, 3
    s_lshl_b32 s{S_NB}, s{S_NB}, 2
    s_lshr_b32 s{S_T1}, s{S_T1}, 3
    s_add_u32 s{S_NB}, s{S_NB}, s{S_T1}
    s_mul_i32 s{S_S0}, s{S_NB}, 7
    s_mul_i32 s{S_T0}, s{S_NB}, 6
    s_add_u32 s{S_T0}, s{S_T0}, 12
    s_min_u32 s{S_S0}, s{S_S0}, s{S_T0}
    s_waitcnt lgkmcnt(0)
    """)
    srd(p, S_HQ, 6, 7, WS_HQ, SZ_HQ)
    srd(p, S_W13, 6, 7, WS_W13, SZ_W13)
    srd(p, S_HU, 6, 7, WS_HU, SZ_HU)
    srd(p, S_CS, 6, 7, WS_CS, SZ_CS)
    srd(p, S_ST, 6, 7, WS_ST, SZ_ST)


def g1_issue(p, half):
    items = []
    if half == 0:
        items += [("h", r) for r in range(8)] + [("w", n) for n in range(3)]
    else:
        items += [("w", n) for n in range(3, 14)]
    for kind, n in items:
        if "nodma" in DBG:
            continue
        if kind == "h":
            p(f"""
            s_add_u32 m0, s{S_M}, {WB + n*HROW}
            s_add_u32 s{S_T0}, s{S_KH}, {n*16384}
            buffer_load_dwordx4 v2, s[{S_HQ}:{S_HQ+3}], s{S_T0} offen lds
            """)
        else:
            p(f"""
            s_add_u32 m0, s{S_M}, {n*1024}
            s_add_u32 s{S_T0}, s{S_KW}, {n*1024}
            buffer_load_dwordx4 v3, s[{S_W13}:{S_W13+3}], s{S_T0} offen lds
            """)


def g1_advance(p):
    p(f"""
    s_add_u32 s{S_KH}, s{S_KH}, {2*8*16384}
    s_add_u32 s{S_KW}, s{S_KW}, {2*221184}
    s_add_u32 s{S_M}, s{S_M}, {STAGE1}
    s_sub_u32 s{S_T1}, s{S_M}, {NSLOT1*STAGE1}
    s_cmp_ge_u32 s{S_M}, {NSLOT1*STAGE1}
    s_cselect_b32 s{S_M}, s{S_T1}, s{S_M}
    """)


def g1_loader_half(p, tag, half):
    for s in range(2):
        g1_issue(p, half)
        g1_advance(p)
    if not FUSED:
        p(f"""
        s_mov_b32 s{S_T1}, {hex(STL)}
        s_mov_b32 m0, s{S_T1}
        s_lshl_b32 s{S_T0}, s{S_MB}, 10
        buffer_load_dwordx4 v4, s[{S_ST}:{S_ST+3}], s{S_T0} offen lds
        """)
    for m in range(2):
        for part in range(NCS):
            r = 16 + (m * NCS + part) * 4
            p(f"s_mov_b32 s{S_T0}, {(part*2 + m)*1728*4}\n"
              f"buffer_load_dwordx4 v[{r}:{r+3}], v5, s[{S_CS}:{S_CS+3}], s{S_T0} offen")
    stamp(p, 2)
    p(f"""
    s_waitcnt vmcnt({19 if FUSED else 20})
    s_barrier
    """)
    g1_issue(p, half)
    g1_advance(p)
    p(f"""
    s_waitcnt vmcnt(11)
    s_barrier
    """)
    g1_issue(p, half)
    g1_advance(p)
    for m in range(2):
        b = 16 + m * NCS * 4
        for r in range(4):
            p(f"v_add_f32 v{b+r}, v{b+r}, v{b+4+r}\nv_add_f32 v{b+8+r}, v{b+8+r}, v{b+12+r}\n"
              f"v_add_f32 v{b+r}, v{b+r}, v{b+8+r}")
    p(f"""
    v_lshlrev_b32 v6, 4, v1
    v_add_u32 v6, {CSL}, v6
    s_mov_b64 exec, 0xfffffff
    ds_write_b128 v6, v[16:19]
    ds_write_b128 v6, v[32:35] offset:448
    s_mov_b64 exec, -1
    s_mov_b32 s{S_CNT}, 2
    L_g1_ld{half}_{tag}:
    s_waitcnt vmcnt(11) lgkmcnt(0)
    s_barrier
    """)
    g1_issue(p, half)
    g1_advance(p)
    p(f"""
    s_add_u32 s{S_CNT}, s{S_CNT}, 1
    s_cmp_lt_u32 s{S_CNT}, 8
    s_cbranch_scc1 L_g1_ld{half}_{tag}
    """)
    if not FUSED:
        stamp(p, 3)
    p(f"""
    s_waitcnt vmcnt(11)
    s_barrier
    s_waitcnt vmcnt(0)
    s_barrier
    """)
    if not FUSED:
        stamp(p, 4)


def g1_loader(p, tag, before_last=None):
    p(f"""
    v_lshlrev_b32 v4, 4, v1
    s_lshl_b32 s{S_T0}, s{S_MB}, 10
    v_add_u32 v2, s{S_T0}, v4
    s_lshl_b32 s{S_T0}, s{S_S0}, 11
    v_add_u32 v3, s{S_T0}, v4
    s_lshl_b32 s{S_T0}, s{S_S0}, 6
    v_add_u32 v5, s{S_T0}, v4
    s_sub_u32 s{S_CNT}, s{S_W}, 4
    s_lshr_b32 s{S_T1}, s{S_CNT}, 1
    s_mul_i32 s{S_KH}, s{S_T1}, {8*16384}
    s_mul_i32 s{S_KW}, s{S_T1}, 221184
    s_mul_i32 s{S_M}, s{S_T1}, {KS1}
    s_and_b32 s{S_CNT}, s{S_CNT}, 1
    s_cmp_eq_u32 s{S_CNT}, 0
    s_cbranch_scc0 L_g1_h1_{tag}
    """)
    g1_loader_half(p, tag, 0)
    p(f"s_branch L_g1_ldone_{tag}\nL_g1_h1_{tag}:")
    g1_loader_half(p, tag, 1)
    p(f"L_g1_ldone_{tag}:")


def g1_reads(W, H, kpar, tag):
    o = kpar * KS1
    r = []
    for u in range(4):
        va = "v6" if u < 2 else "v7"
        for hf in range(2):
            r.append((f"ds_read_b64 v[{H+4*u+2*hf}:{H+4*u+2*hf+1}], {va} offset:{o + WB + hf*4*HROW + (u&1)*128}",
                      (tag, "h", u)))
    for v in range(4):
        for m in range(2):
            if v < 3:
                t = f"ds_read_b128 v[{W+8*v+4*m}:{W+8*v+4*m+3}], v8 offset:{o + v*2048 + m*1024}"
            else:
                t = f"ds_read_b128 v[{W+8*v+4*m}:{W+8*v+4*m+3}], v9 offset:{o + 3*2048 + m*1024}"
            r.append((t, (tag, "w", v, m)))
    return r


def g1_mfmas(W, H, tag):
    out = []
    for v in range(4):
        for m in range(2):
            for u in range(4 if v < 3 else 2):
                a = acc(v, m, u)
                out.append((f"v_mfma_f32_16x16x32_bf16 v[{a}:{a+3}], v[{W+8*v+4*m}:{W+8*v+4*m+3}], "
                            f"v[{H+4*u}:{H+4*u+3}], v[{a}:{a+3}]", [(tag, "h", u), (tag, "w", v, m)]))
    return out


def step(p, q, mfmas, reads):
    ri = 0
    if "noread" in DBG:
        for t, tag in reads:
            q.q.append(tag)
        reads = []
    for text, deps in mfmas:
        if "noread" not in DBG:
            q.need(*deps)
        if "nomfma" not in DBG:
            p(text)
        if ri < len(reads):
            q.issue(*reads[ri]); ri += 1
    while ri < len(reads):
        q.issue(*reads[ri]); ri += 1


def g1_addr(p):
    p(f"""
    v_add_u32 v6, s{S_SLOT}, v2
    v_add_u32 v7, s{S_SLOT}, v3
    v_add_u32 v8, s{S_SLOT}, v4
    v_add_u32 v9, s{S_SLOT}, v5
    """)


def g1_next_slot(p):
    p(f"""
    s_add_u32 s{S_SLOT}, s{S_SLOT}, {STAGE1}
    s_sub_u32 s{S_T0}, s{S_SLOT}, {NSLOT1*STAGE1}
    s_cmp_ge_u32 s{S_SLOT}, {NSLOT1*STAGE1}
    s_cselect_b32 s{S_SLOT}, s{S_T0}, s{S_SLOT}
    """)


def g1_consumer(p, tag, after_init=None):
    q = LdsQueue(p)
    p(f"""
    v_lshrrev_b32 v10, 4, v1
    v_and_b32 v11, 15, v1
    v_mul_u32_u24 v2, {HROW}, v10
    v_lshl_add_u32 v2, v11, 3, v2
    s_and_b32 s{S_T0}, s{S_W}, 1
    s_lshl_b32 s{S_T0}, s{S_T0}, 9
    v_add_u32 v2, s{S_T0}, v2
    s_lshr_b32 s{S_T1}, s{S_W}, 1
    s_lshl_b32 s{S_M}, s{S_T1}, 8
    s_sub_u32 s{S_CNT}, 256, s{S_M}
    v_add_u32 v3, s{S_CNT}, v2
    v_add_u32 v2, s{S_M}, v2
    v_lshlrev_b32 v5, 4, v1
    s_lshl_b32 s{S_M}, s{S_T1}, 13
    v_add_u32 v4, s{S_M}, v5
    """)
    for r in range(ACC, ACC + 112):
        p(f"v_mov_b32 v{r}, 0")
    p(f"s_mov_b32 s{S_SLOT}, 0")
    g1_addr(p)
    if after_init:
        after_init()
    stamp(p, 2)
    p("s_barrier")
    for r in g1_reads(XW, XH, 0, "x"):
        q.issue(*r)
    entry = list(q.q)
    p(f"s_mov_b32 s{S_CNT}, 0\nL_g1_c_{tag}:")
    step(p, q, g1_mfmas(XW, XH, "x"), g1_reads(YW, YH, 1, "y"))
    ydeps = list(q.q)
    p("s_waitcnt lgkmcnt(0)")
    q.q = []
    g1_next_slot(p)
    p("s_barrier")
    g1_addr(p)
    step(p, q, [(t, []) for t, _ in g1_mfmas(YW, YH, "y")], g1_reads(XW, XH, 0, "x"))
    assert DBG or q.q == entry
    p(f"""
    s_add_u32 s{S_CNT}, s{S_CNT}, 1
    s_cmp_lt_u32 s{S_CNT}, 9
    s_cbranch_scc1 L_g1_c_{tag}
    """)
    if not FUSED:
        stamp(p, 3)
    step(p, q, g1_mfmas(XW, XH, "x"), g1_reads(YW, YH, 1, "y"))
    p("s_waitcnt lgkmcnt(0)")
    q.q = []
    if FUSED:
        p("s_barrier")
    for t, _ in g1_mfmas(YW, YH, "y"):
        p(t)
    stamp(p, 4) if not FUSED else None
    g1_epilogue(p, tag)


def g1_epilogue(p, tag):
    ST = 128
    R2 = 136
    C = 144
    ONE = 176
    T = 178
    O = 200
    p(f"""
    v_and_b32 v11, 15, v1
    v_lshlrev_b32 v11, 3, v11
    v_add_u32 v11, {STL}, v11
    s_and_b32 s{S_T0}, s{S_W}, 1
    s_lshl_b32 s{S_T0}, s{S_T0}, 9
    v_add_u32 v11, s{S_T0}, v11
    s_lshr_b32 s{S_T1}, s{S_W}, 1
    s_lshl_b32 s{S_M}, s{S_T1}, 8
    s_sub_u32 s{S_CNT}, 256, s{S_M}
    v_add_u32 v7, s{S_CNT}, v11
    v_add_u32 v6, s{S_M}, v11
    v_lshrrev_b32 v10, 4, v1
    v_lshlrev_b32 v10, 4, v10
    v_add_u32 v10, {CSL}, v10
    s_lshl_b32 s{S_M}, s{S_T1}, 8
    v_add_u32 v8, s{S_M}, v10
    """)
    for u in range(4):
        va = "v6" if u < 2 else "v7"
        p(f"ds_read_b64 v[{ST+2*u}:{ST+2*u+1}], {va} offset:{(u&1)*128}")
    for v in range(4):
        for m in range(2):
            r = C + (v * 2 + m) * 4
            if v < 3:
                p(f"ds_read_b128 v[{r}:{r+3}], v8 offset:{m*448 + v*64}")
            else:
                p(f"ds_read_b128 v[{r}:{r+3}], v10 offset:{m*448 + 3*64}")
    p(f"""
    v_lshlrev_b32 v12, 4, v1
    s_and_b32 s{S_T0}, s{S_W}, 1
    s_lshl_b32 s{S_T0}, s{S_T0}, 1
    s_lshl_b32 s{S_M}, s{S_MB}, 2
    s_add_u32 s{S_M}, s{S_M}, s{S_T0}
    s_add_u32 s{S_KH}, s{S_M}, s{S_T1}
    s_sub_u32 s{S_KW}, 1, s{S_T1}
    s_add_u32 s{S_KW}, s{S_KW}, s{S_M}
    s_mul_i32 s{S_KH}, s{S_KH}, 108
    s_mul_i32 s{S_KW}, s{S_KW}, 108
    s_add_u32 s{S_KH}, s{S_KH}, s{S_S0}
    s_add_u32 s{S_KW}, s{S_KW}, s{S_S0}
    s_lshl_b32 s{S_KH}, s{S_KH}, 10
    s_lshl_b32 s{S_KW}, s{S_KW}, 10
    s_lshl_b32 s{S_SLOT}, s{S_T1}, 12
    s_cmp_ge_u32 s{S_NB}, 12
    s_cselect_b32 s{S_INV}, s{S_T1}, 0
    s_lshl_b32 s{S_INV}, s{S_INV}, 30
    v_mov_b32 v{ONE}, 1.0
    v_mov_b32 v{ONE+1}, 1.0
    s_waitcnt lgkmcnt(0)
    """)
    for u in range(4):
        m, r = ST + 2 * u, ST + 2 * u + 1
        p(f"""
        v_mul_f32 v{R2+2*u}, v{r}, v{r}
        v_mul_f32 v{r}, 0xbfb8aa3b, v{r}
        v_sub_f32 v{m}, 0, v{m}
        """)
    for v in range(4):
        if v < 3:
            p(f"s_add_u32 s{S_T0}, s{S_SLOT}, {v*1024}")
        else:
            p(f"s_movk_i32 s{S_T0}, {3*1024}")
        if v == 2:
            p(f"s_add_u32 s{S_T0}, s{S_T0}, s{S_INV}")
        for up in range(2 if v < 3 else 1):
            o = O + 4 * up
            for uu in range(2):
                u = 2 * up + uu
                g, h = acc(v, 0, u), acc(v, 1, u)
                c1, c3 = C + (v * 2) * 4, C + (v * 2 + 1) * 4
                st = ST + 2 * u
                for k in range(2):
                    a, b, z, n = T + 2 * k, T + 4 + 2 * k, T + 8 + 2 * k, T + 12 + 2 * k
                    p(f"""
                    v_pk_fma_f32 v[{a}:{a+1}], v[{c1+2*k}:{c1+2*k+1}], v[{st}:{st+1}], v[{g+2*k}:{g+2*k+1}] op_sel:[0,0,0] op_sel_hi:[1,0,1]
                    v_pk_fma_f32 v[{b}:{b+1}], v[{c3+2*k}:{c3+2*k+1}], v[{st}:{st+1}], v[{h+2*k}:{h+2*k+1}] op_sel:[0,0,0] op_sel_hi:[1,0,1]
                    v_pk_mul_f32 v[{z}:{z+1}], v[{a}:{a+1}], v[{st}:{st+1}] op_sel:[0,1] op_sel_hi:[1,1]
                    v_pk_mul_f32 v[{n}:{n+1}], v[{a}:{a+1}], v[{b}:{b+1}]
                    """)
                for k in range(2):
                    z = T + 8 + 2 * k
                    p(f"v_exp_f32 v{z}, v{z}\nv_exp_f32 v{z+1}, v{z+1}")
                for k in range(2):
                    z, n = T + 8 + 2 * k, T + 12 + 2 * k
                    p(f"""
                    v_pk_mul_f32 v[{n}:{n+1}], v[{n}:{n+1}], v[{R2+2*u}:{R2+2*u+1}] op_sel:[0,0] op_sel_hi:[1,0]
                    v_pk_add_f32 v[{z}:{z+1}], v[{z}:{z+1}], v[{ONE}:{ONE+1}]
                    """)
                for k in range(2):
                    z = T + 8 + 2 * k
                    p(f"v_rcp_f32 v{z}, v{z}\nv_rcp_f32 v{z+1}, v{z+1}")
                for k in range(2):
                    z, n = T + 8 + 2 * k, T + 12 + 2 * k
                    p(f"v_pk_mul_f32 v[{n}:{n+1}], v[{n}:{n+1}], v[{z}:{z+1}]")
                for k in range(2):
                    n = T + 12 + 2 * k
                    p(f"v_cvt_pk_bf16_f32 v{o+2*uu+k}, v{n}, v{n+1}")
            base = S_KH if up == 0 else S_KW
            p(f"""
            s_add_u32 s{S_M}, s{base}, s{S_T0}
            buffer_store_dwordx4 v[{o}:{o+3}], v12, s[{S_HU}:{S_HU+3}], s{S_M} offen sc1
            """)


def build_g1(tag="a"):
    p = Prog()
    p(f"""
    s_cmp_ge_u32 s2, 256
    s_cbranch_scc1 L_g1_end_{tag}
    """)
    stamp(p, 0)
    g1_setup(p)
    stamp(p, 1)
    p(f"""
    s_cmp_ge_u32 s{S_W}, 4
    s_cbranch_scc1 L_g1_loader_{tag}
    """)
    g1_consumer(p, tag)
    p(f"s_branch L_g1_fin_{tag}\nL_g1_loader_{tag}:")
    g1_loader(p, tag)
    p(f"L_g1_fin_{tag}:")
    if common.STAMPS:
        p("s_waitcnt vmcnt(0)")
        stamp(p, 5)
        stamp_flush(p, 6, S_W, 6, 7, tmpv=240)
    p(f"L_g1_end_{tag}:\ns_endpgm")
    return p
```

```python
from asmgen import Prog
import common
from common import *

KS_BYTES = 9216
STAGE = 4 * KS_BYTES
NSLOT = 4
LDS_G2 = NSLOT * STAGE

S_W2, S_HU, S_HQ, S_OUT = 8, 12, 16, 20
S_W, S_TB, S_DB, S_SLOT, S_CNT, S_T0, S_T1, S_KOFF, S_WOFF, S_M = 24, 25, 26, 27, 28, 29, 30, 31, 32, 33


def g2_setup(p):
    p(f"""
    s_load_dwordx2 s[4:5], s[0:1], {KA['w2']}
    s_load_dwordx2 s[6:7], s[0:1], {KA['ws']}
    s_load_dwordx2 s[34:35], s[0:1], {KA['out']}
    v_lshrrev_b32 v2, 6, v0
    v_and_b32 v1, 63, v0
    s_and_b32 s{S_T0}, s2, 7
    s_lshr_b32 s{S_T1}, s2, 3
    v_readfirstlane_b32 s{S_W}, v2
    s_lshr_b32 s{S_TB}, s{S_T0}, 1
    s_lshl_b32 s{S_TB}, s{S_TB}, 3
    s_and_b32 s{S_DB}, s{S_T1}, 7
    s_add_u32 s{S_TB}, s{S_TB}, s{S_DB}
    s_and_b32 s{S_DB}, s{S_T0}, 1
    s_lshl_b32 s{S_DB}, s{S_DB}, 2
    s_lshr_b32 s{S_T1}, s{S_T1}, 3
    s_add_u32 s{S_DB}, s{S_DB}, s{S_T1}
    s_waitcnt lgkmcnt(0)
    """)
    srd(p, S_W2, 6, 7, WS_W2P, SZ_W2P)
    srd(p, S_HU, 6, 7, WS_HU, SZ_HU)
    srd(p, S_HQ, 6, 7, WS_HQ, SZ_HQ)
    srd(p, S_OUT, 34, 35, 0, L * D * 2)


DBG = set()


def g2_issue_kstep(p):
    for b in range(2):
        for a in range(2):
            if "allW" in DBG:
                p(f"s_add_u32 m0, s{S_M}, {(2*b+a)*1024}\ns_nop 0\nbuffer_load_dwordx4 v{3+2*b+a}, s[{S_W2}:{S_W2+3}], s{S_WOFF} offen lds")
                continue
            if "noH" in DBG:
                p(f"s_mov_b32 m0, s{S_M}\ns_movk_i32 s{S_T0}, 0\nbuffer_load_dword v2, s[{S_HU}:{S_HU+3}], s{S_T0} offen lds")
                continue
            p(f"""
            s_add_u32 m0, s{S_M}, {(2*b+a)*1024}
            s_add_u32 s{S_T0}, s{S_KOFF}, {b*108*1024 + a*1024}
            buffer_load_dwordx4 v2, s[{S_HU}:{S_HU+3}], s{S_T0} offen lds
            """)
    for i in range(5):
        if "allH" in DBG:
            p(f"s_add_u32 m0, s{S_M}, {4096 + i*1024}\ns_add_u32 s{S_T0}, s{S_KOFF}, {i*1024}\nbuffer_load_dwordx4 v2, s[{S_HU}:{S_HU+3}], s{S_T0} offen lds")
            continue
        if "noW" in DBG:
            p(f"s_mov_b32 m0, s{S_M}\ns_movk_i32 s{S_T0}, 0\nbuffer_load_dword v2, s[{S_HU}:{S_HU+3}], s{S_T0} offen lds")
            continue
        p(f"""
        s_add_u32 m0, s{S_M}, {4096 + i*1024}
        s_add_u32 s{S_T0}, s{S_WOFF}, {i*1024}
        buffer_load_dwordx4 v3, s[{S_W2}:{S_W2+3}], s{S_T0} offen lds
        """)


def g2_loader(p, tag):
    p(f"""
    s_mul_i32 s{S_T0}, s{S_TB}, {2*108*1024}
    v_lshlrev_b32 v2, 4, v1
    v_add_u32 v2, s{S_T0}, v2
    s_mul_i32 s{S_T0}, s{S_DB}, {5*1024}
    v_lshlrev_b32 v3, 4, v1
    v_add_u32 v3, s{S_T0}, v3
    """)
    p(f"""
    s_sub_u32 s{S_CNT}, s{S_W}, 4
    s_lshl_b32 s{S_KOFF}, s{S_CNT}, 11
    s_mul_i32 s{S_WOFF}, s{S_CNT}, 40960
    s_mul_i32 s{S_SLOT}, s{S_CNT}, {KS_BYTES}
    """)
    for s in range(3):
        p(f"s_add_u32 s{S_M}, s{S_SLOT}, {s*STAGE}")
        g2_issue_kstep(p)
        p(f"s_add_u32 s{S_KOFF}, s{S_KOFF}, {4*2048}\ns_add_u32 s{S_WOFF}, s{S_WOFF}, {4*40960}")
    p(f"""
    s_add_u32 s{S_M}, s{S_SLOT}, {3*STAGE}
    s_mov_b32 s{S_CNT}, 0
    """)
    stamp(p, 2)
    p(f"""
    L_g2_ld_{tag}:
    s_waitcnt vmcnt(18)
    s_barrier
    """)
    g2_issue_kstep(p)
    p(f"""
    s_add_u32 s{S_KOFF}, s{S_KOFF}, {0 if "samek" in DBG else 4*2048}
    s_add_u32 s{S_WOFF}, s{S_WOFF}, {0 if "samek" in DBG else 4*40960}
    s_add_u32 s{S_M}, s{S_M}, {STAGE}
    s_sub_u32 s{S_T0}, s{S_M}, {NSLOT*STAGE}
    s_cmp_ge_u32 s{S_M}, {NSLOT*STAGE}
    s_cselect_b32 s{S_M}, s{S_T0}, s{S_M}
    s_add_u32 s{S_CNT}, s{S_CNT}, 1
    s_cmp_lt_u32 s{S_CNT}, 11
    s_cbranch_scc1 L_g2_ld_{tag}
    """)
    stamp(p, 3)
    stamp(p, 4)
    p(f"""
    s_waitcnt vmcnt(18)
    s_barrier
    s_waitcnt vmcnt(9)
    s_barrier
    s_waitcnt vmcnt(0)
    s_barrier
    s_barrier
    s_barrier
    """)


ACC = 16
XA, XB = 56, 76
YA, YB = 84, 104
RES = 112
TMP = 122


def acc(h, j):
    b = ACC + (h * 5 + j) * 4
    return f"v[{b}:{b+3}]"


def g2_reads(q, A, B, sub, tag):
    o = sub * KS_BYTES
    r = []
    for h in range(2):
        for a in range(2):
            r.append((f"ds_read_b64 v[{B+4*h+2*a}:{B+4*h+2*a+1}], v5 offset:{o + a*1024 + 8*h}", (tag, "B")))
    for j in range(5):
        r.append((f"ds_read_b128 v[{A+4*j}:{A+4*j+3}], v4 offset:{o + 4096 + 1024*j}", (tag, "A", j)))
    return r


def g2_mfmas(A, B):
    return [(f"v_mfma_f32_16x16x32_bf16 {acc(h,j)}, v[{A+4*j}:{A+4*j+3}], v[{B+4*h}:{B+4*h+3}], {acc(h,j)}", j)
            for j in range(5) for h in range(2)]


def interleave(p, q, reads, mfmas, per=1):
    if "nocomp" in DBG:
        return
    ri = 0
    for m, _ in mfmas:
        for _ in range(per):
            if ri < len(reads):
                q.issue(*reads[ri]); ri += 1
        p(m)
    while ri < len(reads):
        q.issue(*reads[ri]); ri += 1


def g2_consumer(p, tag, pre_loop=None):
    q = LdsQueue(p)
    p(f"""
    v_lshrrev_b32 v6, 4, v1
    v_lshlrev_b32 v2, 4, v1
    s_lshr_b32 s{S_T0}, s{S_W}, 1
    s_mul_i32 s{S_T1}, s{S_T0}, {KS_BYTES}
    v_add_u32 v2, s{S_T1}, v2
    s_and_b32 s{S_CNT}, s{S_W}, 1
    s_lshl_b32 s{S_M}, s{S_CNT}, 11
    s_add_u32 s{S_M}, s{S_M}, s{S_T1}
    v_lshlrev_b32 v3, 4, v1
    v_add_u32 v3, s{S_M}, v3
    """)
    p(f"""
    s_lshl_b32 s{S_M}, s{S_TB}, 6
    s_lshl_b32 s{S_CNT}, s{S_CNT}, 5
    s_add_u32 s{S_M}, s{S_M}, s{S_CNT}
    s_lshl_b32 s{S_T0}, s{S_T0}, 4
    s_add_u32 s{S_M}, s{S_M}, s{S_T0}
    v_and_b32 v9, 15, v1
    v_add_u32 v9, s{S_M}, v9
    s_mul_i32 s{S_T0}, s{S_DB}, 20
    v_add_u32 v10, s{S_T0}, v6
    v_lshlrev_b32 v10, 14, v10
    v_lshl_add_u32 v10, v9, 3, v10
    """)
    for j in range(5):
        p(f"s_mov_b32 s{S_T0}, {j*4*16384}\n"
          f"buffer_load_dwordx2 v[{RES+2*j}:{RES+2*j+1}], v10, s[{S_HQ}:{S_HQ+3}], s{S_T0} offen")
    p(f"""
    s_movk_i32 s{S_T0}, 1280
    v_mul_lo_u32 v11, v9, s{S_T0}
    s_mul_i32 s{S_T0}, s{S_DB}, 160
    v_lshl_add_u32 v11, v6, 3, v11
    v_add_u32 v11, s{S_T0}, v11
    """)
    for r in list(range(ACC, ACC + 40)) + list(range(YA, YA + 28)):
        p(f"v_mov_b32 v{r}, 0")
    p(f"""
    s_mov_b32 s{S_SLOT}, 0
    s_mov_b32 s{S_CNT}, 0
    """)
    if pre_loop:
        pre_loop()
    else:
        stamp(p, 2)
    p(f"""
    L_g2_c_{tag}:
    v_add_u32 v4, s{S_SLOT}, v2
    v_add_u32 v5, s{S_SLOT}, v3
    s_barrier
    """)
    interleave(p, q, g2_reads(q, XA, XB, 0, "x"), g2_mfmas(YA, YB))
    q.p("s_waitcnt lgkmcnt(0)"); q.q = []
    interleave(p, q, g2_reads(q, YA, YB, 2, "y"), g2_mfmas(XA, XB))
    q.drain()
    p(f"""
    s_add_u32 s{S_SLOT}, s{S_SLOT}, {STAGE}
    s_sub_u32 s{S_T0}, s{S_SLOT}, {NSLOT*STAGE}
    s_cmp_ge_u32 s{S_SLOT}, {NSLOT*STAGE}
    s_cselect_b32 s{S_SLOT}, s{S_T0}, s{S_SLOT}
    s_add_u32 s{S_CNT}, s{S_CNT}, 1
    s_cmp_lt_u32 s{S_CNT}, 13
    s_cbranch_scc1 L_g2_c_{tag}
    """)
    if not pre_loop:
        stamp(p, 3)
    p(f"""
    v_add_u32 v4, s{S_SLOT}, v2
    v_add_u32 v5, s{S_SLOT}, v3
    s_barrier
    """)
    interleave(p, q, g2_reads(q, XA, XB, 0, "x"), g2_mfmas(YA, YB))
    q.drain()
    for m, _ in g2_mfmas(XA, XB):
        p(m)
    stamp(p, 4)
    p(f"""
    s_barrier
    s_lshr_b32 s{S_T0}, s{S_W}, 1
    s_mul_i32 s{S_T1}, s{S_W}, 5120
    v_lshlrev_b32 v4, 4, v1
    v_add_u32 v5, s{S_T1}, v4
    s_xor_b32 s{S_M}, s{S_W}, 2
    s_mul_i32 s{S_M}, s{S_M}, 5120
    v_add_u32 v4, s{S_M}, v4
    s_cmp_eq_u32 s{S_T0}, 0
    s_cbranch_scc0 L_g2_send0_{tag}
    """)
    for j in range(5):
        p(f"ds_write_b128 v5, {acc(1, j)} offset:{j*1024}")
    p(f"s_branch L_g2_sent_{tag}\nL_g2_send0_{tag}:")
    for j in range(5):
        p(f"ds_write_b128 v5, {acc(0, j)} offset:{j*1024}")
    for j in range(5):
        for r in range(4):
            p(f"v_mov_b32 v{ACC + j*4 + r}, v{ACC + 20 + j*4 + r}")
    p(f"""
    L_g2_sent_{tag}:
    s_waitcnt lgkmcnt(0)
    s_barrier
    """)
    for j in range(5):
        p(f"ds_read_b128 v[{XA+4*j}:{XA+4*j+3}], v4 offset:{j*1024}")
    p("s_waitcnt vmcnt(0) lgkmcnt(0)")
    for j in range(5):
        a, x, t = ACC + 4 * j, XA + 4 * j, TMP
        for r in range(4):
            p(f"v_add_f32 v{a+r}, v{a+r}, v{x+r}")
        p(f"""
        v_cvt_pk_bf16_f32 v{t}, v{a}, v{a+1}
        v_cvt_pk_bf16_f32 v{t+1}, v{a+2}, v{a+3}
        v_lshlrev_b32 v{a}, 16, v{t}
        v_and_b32 v{a+1}, 0xffff0000, v{t}
        v_lshlrev_b32 v{a+2}, 16, v{t+1}
        v_and_b32 v{a+3}, 0xffff0000, v{t+1}
        v_lshlrev_b32 v{t}, 16, v{RES+2*j}
        v_and_b32 v{t+1}, 0xffff0000, v{RES+2*j}
        v_lshlrev_b32 v{t+2}, 16, v{RES+2*j+1}
        v_and_b32 v{t+3}, 0xffff0000, v{RES+2*j+1}
        v_add_f32 v{a}, v{a}, v{t}
        v_add_f32 v{a+1}, v{a+1}, v{t+1}
        v_add_f32 v{a+2}, v{a+2}, v{t+2}
        v_add_f32 v{a+3}, v{a+3}, v{t+3}
        v_cvt_pk_bf16_f32 v{RES+2*j}, v{a}, v{a+1}
        v_cvt_pk_bf16_f32 v{RES+2*j+1}, v{a+2}, v{a+3}
        buffer_store_dwordx2 v[{RES+2*j}:{RES+2*j+1}], v11, s[{S_OUT}:{S_OUT+3}], 0 offen offset:{32*j}
        """)


def build_g2(tag="a"):
    p = Prog()
    p(f"""
    s_cmp_ge_u32 s2, 256
    s_cbranch_scc1 L_g2_end_{tag}
    """)
    stamp(p, 0)
    cstamp(p, 6)
    g2_setup(p)
    stamp(p, 1)
    p(f"""
    s_cmp_ge_u32 s{S_W}, 4
    s_cbranch_scc1 L_g2_loader_{tag}
    """)
    g2_consumer(p, tag)
    p(f"s_branch L_g2_fin_{tag}\nL_g2_loader_{tag}:")
    g2_loader(p, tag)
    p(f"L_g2_fin_{tag}:")
    if common.STAMPS:
        p("s_waitcnt vmcnt(0)")
        stamp(p, 5)
        cstamp(p, 7)
        stamp_flush(p, 8, S_W, 6, 7)
    p(f"L_g2_end_{tag}:\ns_endpgm")
    return p
```

```python
import sys
sys.path.insert(0, "work")
import common
from common import *
from asmgen import Prog, kernel_text

HEADER = """; sequential_preLN -> S4 FFT-conv block -> SwiGLU FFN, gfx950.
"""

def empty_kernel():
    p = Prog()
    p("s_endpgm")
    return p

def write(path, kernels):
    hdr = HEADER + "".join(f"; @launch kernel={n} grid=({g},1,1) block=({b},1,1) lds={l}\n" for n, _, g, b, l, _ in kernels)
    seen, body = set(), ""
    for n, prog, g, b, l, v in kernels:
        if n in seen: continue
        seen.add(n)
        body += kernel_text(n, prog.finalize(), vgprs=v)
    open(path, "w").write(hdr + '.amdgcn_target "amdgcn-amd-amdhsa--gfx950"\n' + body)

def multi(extra_empty=0):
    import ln1, kgen, repack, conv, stats, g1, g2
    k = [("ln1_kernel", ln1.build_ln1(), 64, 512, ln1.LN_LDS, 128),
         ("kgen_kernel", kgen.build_kgen(), 160, 512, kgen.KG_LDS, 128),
         ("repack_kernel", repack.build_repack(), 41, 512, 8 * repack.RP_LDS_WAVE, 128),
         ("conv_kernel", conv.build_conv(), 160, 512, conv.CONV_LDS, 256),
         ("stats_kernel", stats.build_stats(), 256, 64, 0, 128),
         ("g1_kernel", g1.build_g1(), 256, 512, g1.LDS_G1, 256),
         ("g2_kernel", g2.build_g2(), 256, 512, g2.LDS_G2, 208)]
    e = empty_kernel()
    for i in range(extra_empty):
        k.insert(3, ("empty_kernel", e, 1, 64, 0, 8))
    return k

def three():
    import front, ffn
    return [("front1_kernel", front.build_front1(), 225, 512, front.LDS_F1, 128),
            ("front2_kernel", front.build_front2(), 256, 512, front.LDS_F2, 256),
            ("ffn_kernel", ffn.build_ffn(), 256, 512, ffn.LDS_FFN, 256)]

if __name__ == "__main__":
    if "three" in sys.argv:
        write("v_three.s", three())
        sys.exit(0)
    write("v_multi7.s", multi())
    write("v_multi15.s", multi(8))
```

```python
L, D, F, N = 2048, 640, 1728, 128

KA = dict(u=0, A_re=8, A_im=16, B_re=24, B_im=32, C_re=40, C_im=48, log_dt=56, Dskip=64,
          x_unused=72, w1=80, w3=88, w2=96, out=104, dbg=112, ws=120)

WS_UX, SZ_UX = 0x0000000, 160 * 2048 * 16
WS_HQ, SZ_HQ = 0x0600000, 160 * 2048 * 8
WS_HU, SZ_HU = 0x0900000, 64 * 108 * 1024
KROW = 4608
WS_KG, SZ_KG = 0x1000000, 640 * KROW
WS_CS, SZ_CS = 0x1400000, 2 * 1728 * 4
WS_ST, SZ_ST = 0x1410000, 2048 * 8
WS_FL, SZ_FL = 0x1420000, 0x10000
WS_W13, SZ_W13 = 0x1600000, 20 * 108 * 2 * 1024
WS_W2P, SZ_W2P = 0x1B00000, 54 * 40 * 1024
NCS = 4
SZ_CS = NCS * 2 * 1728 * 4

SRD3 = 0x00020000


def srd(p, s, lo, hi, off, size):
    if off:
        p(f"s_add_u32 s{s}, s{lo}, {off}\ns_addc_u32 s{s+1}, s{hi}, 0")
    else:
        p(f"s_mov_b32 s{s}, s{lo}\ns_mov_b32 s{s+1}, s{hi}")
    p(f"s_mov_b32 s{s+2}, {size}\ns_mov_b32 s{s+3}, {SRD3}")


class LdsQueue:
    def __init__(self, p):
        self.p = p
        self.q = []

    def issue(self, text, tag):
        self.p(text)
        self.q.append(tag)

    def need(self, *tags):
        idx = -1
        for t in tags:
            for i, x in enumerate(self.q):
                if x == t:
                    idx = max(idx, i)
        if idx < 0:
            return
        left = len(self.q) - idx - 1
        if left <= 15:
            self.p(f"s_waitcnt lgkmcnt({left})")
            self.q = self.q[idx + 1:]
        else:
            self.p("s_waitcnt lgkmcnt(15)")
            self.q = self.q[-15:]
            self.need(*tags)

    def drain(self):
        if self.q:
            self.p("s_waitcnt lgkmcnt(0)")
            self.q = []


STAMPS = False
WS_STAMP = 0x1F00000
S_STAMP = 64


CYC = False


def stamp(p, k):
    if STAMPS:
        p(f"{'s_memtime' if CYC else 's_memrealtime'} s[{S_STAMP+2*k}:{S_STAMP+2*k+1}]")


def cstamp(p, k):
    if STAMPS:
        p(f"s_memtime s[{S_STAMP+2*k}:{S_STAMP+2*k+1}]")


STAMP_BANK = 0


def stamp_flush(p, n, wave_sgpr, ws_lo, ws_hi, tmpv=200):
    if not STAMPS:
        return
    p("s_waitcnt lgkmcnt(0)")
    p(f"""
    s_add_u32 s96, s{ws_lo}, {WS_STAMP + STAMP_BANK * 0x40000}
    s_addc_u32 s97, s{ws_hi}, 0
    s_mov_b32 s98, 0x40000
    s_mov_b32 s99, {SRD3}
    s_lshl_b32 s95, s2, 4
    s_add_u32 s95, s95, s{wave_sgpr}
    s_lshl_b32 s95, s95, 6
    v_mov_b32 v{tmpv}, s95
    s_mov_b64 exec, 1
    """)
    for k in range(n):
        p(f"v_mov_b32 v{tmpv+1}, s{S_STAMP+2*k}\n"
          f"buffer_store_dword v{tmpv+1}, v{tmpv}, s[96:99], 0 offen offset:{4*k}\ns_waitcnt vmcnt(0)")
    p("s_mov_b64 exec, -1")
```

```python
import common
from asmgen import Prog
from common import *
import g1, g2, g2n
from stats import finish_stats

G1_CSL = 143360
G1_STL = G1_CSL + 1024
LDS_FFN = G1_STL + 1024
FL_CNT = 0
FL_REL = 128
POLL_MAX = 200000

S_WS = 6
S_OUTP = 92
S_FL = 88


def stats_rows(p, tag):
    X, vA, vT, ONES, M0, M1, V0, V1, U = 200, 196, 197, 198, 192, 193, 194, 195, 212
    T0, T1 = g1.S_T0, g1.S_T1
    p(f"""
    s_lshl_b32 s{T0}, s{g1.S_MB}, 7
    s_lshl_b32 s{T1}, s{g1.S_NB}, 3
    s_add_u32 s{T0}, s{T0}, s{T1}
    s_lshl_b32 s{T1}, s{g1.S_W}, 1
    s_add_u32 s{T0}, s{T0}, s{T1}
    s_lshl_b32 s94, s{T0}, 3
    v_lshlrev_b32 v{vA}, 14, v1
    v_add_u32 v{vA}, s94, v{vA}
    buffer_load_dwordx4 v[{X}:{X+3}], v{vA}, s[{g1.S_HQ}:{g1.S_HQ+3}], 0 offen
    s_mov_b32 s{T1}, {64*16384}
    buffer_load_dwordx4 v[{X+4}:{X+7}], v{vA}, s[{g1.S_HQ}:{g1.S_HQ+3}], s{T1} offen
    s_mov_b32 s{T1}, {128*16384}
    buffer_load_dwordx4 v[{X+8}:{X+11}], v{vA}, s[{g1.S_HQ}:{g1.S_HQ+3}], s{T1} offen
    """)


def wave_sum(p, v, t):
    for n in (1, 2, 4, 8):
        p(f"v_add_f32_dpp v{v}, v{v}, v{v} row_ror:{n} row_mask:0xf bank_mask:0xf")
    p(f"""
    v_mov_b32 v{t}, v{v}
    v_permlane16_swap_b32 v{v}, v{t}
    v_add_f32 v{v}, v{v}, v{t}
    v_mov_b32 v{t}, v{v}
    v_permlane32_swap_b32 v{v}, v{t}
    v_add_f32 v{v}, v{v}, v{t}
    """)


def stats_finish(p, tag):
    X, vA, vT, ONES, M0, M1, V0, V1, U = 200, 196, 197, 198, 192, 193, 194, 195, 212
    p(f"""
    v_mov_b32 v{ONES}, 0x3f803f80
    v_mov_b32 v{M0}, 0
    v_mov_b32 v{M1}, 0
    v_mov_b32 v{V0}, 0
    v_mov_b32 v{V1}, 0
    s_waitcnt vmcnt(0)
    """)
    for i in range(3):
        for k in range(2):
            a, b = X + 4 * i + k, X + 4 * i + 2 + k
            p(f"""
            v_dot2_f32_bf16 v{M0}, v{a}, v{ONES}, v{M0}
            v_dot2_f32_bf16 v{M1}, v{b}, v{ONES}, v{M1}
            v_dot2_f32_bf16 v{V0}, v{a}, v{a}, v{V0}
            v_dot2_f32_bf16 v{V1}, v{b}, v{b}, v{V1}
            """)
    for v in (M0, M1, V0, V1):
        wave_sum(p, v, vT)
    p(f"""
    v_mul_f32 v{M0}, 0x3acccccd, v{M0}
    v_mul_f32 v{M1}, 0x3acccccd, v{M1}
    v_mul_f32 v{V0}, 0x3acccccd, v{V0}
    v_mul_f32 v{V1}, 0x3acccccd, v{V1}
    v_fma_f32 v{V0}, -v{M0}, v{M0}, v{V0}
    v_fma_f32 v{V1}, -v{M1}, v{M1}, v{V1}
    v_max_f32 v{V0}, 0, v{V0}
    v_max_f32 v{V1}, 0, v{V1}
    """)
    finish_stats(p, M0, V0, vT)
    finish_stats(p, M1, V1, vT)
    p(f"""
    v_mov_b32 v{U}, v{M0}
    v_mov_b32 v{U+1}, v{V0}
    v_mov_b32 v{U+2}, v{M1}
    v_mov_b32 v{U+3}, v{V1}
    v_mov_b32 v{vA}, s94
    s_mov_b64 exec, 1
    buffer_store_dwordx4 v[{U}:{U+3}], v{vA}, s[{g1.S_ST}:{g1.S_ST+3}], 0 offen sc1
    s_mov_b64 exec, -1
    """)


def stats_gather(p, tag):
    p(f"""
    s_cmp_eq_u32 s{g1.S_W}, 4
    s_cbranch_scc0 L_sg_done_{tag}
    v_lshlrev_b32 v6, 4, v1
    s_lshl_b32 s{g1.S_T0}, s{g1.S_MB}, 10
    s_mov_b32 s{g1.S_T1}, 0
    L_sg_poll_{tag}:
    buffer_load_dwordx4 v[8:11], v6, s[{g1.S_ST}:{g1.S_ST+3}], s{g1.S_T0} offen sc1
    s_waitcnt vmcnt(0)
    v_cmp_eq_u32 vcc, -1, v9
    v_cmp_eq_u32 s[94:95], -1, v11
    s_or_b64 vcc, vcc, s[94:95]
    s_cmp_eq_u64 vcc, 0
    s_cbranch_scc1 L_sg_ok_{tag}
    s_add_u32 s{g1.S_T1}, s{g1.S_T1}, 1
    s_cmp_lt_u32 s{g1.S_T1}, {POLL_MAX}
    s_cbranch_scc1 L_sg_poll_{tag}
    L_sg_ok_{tag}:
    v_add_u32 v6, {G1_STL}, v6
    ds_write_b128 v6, v[8:11]
    s_waitcnt lgkmcnt(0)
    L_sg_done_{tag}:
    """)


def arrive_and_wait(p, tag, s_mb_arrive, s_mb_wait):
    T0, T1 = 84, 85
    p(f"""
    s_cmp_eq_u32 s{g1.S_W}, 4
    s_cbranch_scc0 L_aw_done_{tag}
    s_lshl_b32 s{T0}, s{s_mb_arrive}, 8
    v_mov_b32 v6, s{T0}
    v_mov_b32 v8, 1
    s_mov_b64 exec, 1
    buffer_atomic_add v8, v6, s[{S_FL}:{S_FL+3}], 0 offen offset:{FL_CNT} sc0 sc1
    s_waitcnt vmcnt(0)
    v_readfirstlane_b32 s{T1}, v8
    s_cmp_eq_u32 s{T1}, 15
    s_cbranch_scc0 L_aw_notlast_{tag}
    v_mov_b32 v8, 1
    buffer_store_dword v8, v6, s[{S_FL}:{S_FL+3}], 0 offen offset:{FL_REL} sc1
    L_aw_notlast_{tag}:
    s_lshl_b32 s{T0}, s{s_mb_wait}, 8
    v_mov_b32 v6, s{T0}
    s_mov_b32 s{T1}, 0
    L_aw_poll_{tag}:
    buffer_load_dword v8, v6, s[{S_FL}:{S_FL+3}], 0 offen offset:{FL_REL} sc1
    s_waitcnt vmcnt(0)
    v_readfirstlane_b32 s94, v8
    s_cmp_lg_u32 s94, 0
    s_cbranch_scc1 L_aw_ok_{tag}
    s_add_u32 s{T1}, s{T1}, 1
    s_cmp_lt_u32 s{T1}, {POLL_MAX}
    s_cbranch_scc1 L_aw_poll_{tag}
    L_aw_ok_{tag}:
    s_mov_b64 exec, -1
    L_aw_done_{tag}:
    """)


def g2_coords(p):
    p(f"""
    s_and_b32 s{g2.S_T0}, s2, 7
    s_lshr_b32 s{g2.S_T1}, s2, 3
    s_lshl_b32 s{g2.S_TB}, s{g2.S_T0}, 2
    s_and_b32 s{g2.S_DB}, s{g2.S_T1}, 3
    s_add_u32 s{g2.S_TB}, s{g2.S_TB}, s{g2.S_DB}
    s_lshr_b32 s{g2.S_DB}, s{g2.S_T1}, 2
    """)


PF = set()


def w2_l2_prefetch(p):
    if "w2" not in PF:
        return 0
    srd(p, 40, S_WS, S_WS + 1, WS_W2P, SZ_W2P)
    p(f"""
    s_lshr_b32 s44, s2, 3
    s_mul_i32 s44, s44, 69120
    s_sub_u32 s45, s{g1.S_W}, 4
    s_mul_i32 s45, s45, {3*8192}
    s_add_u32 s44, s44, s45
    v_lshlrev_b32 v61, 7, v1
    """)
    for n in range(3):
        p(f"buffer_load_dword v60, v61, s[40:43], s44 offen\ns_add_u32 s44, s44, 8192".replace("\\n", "\n"))
    return 3


def h_l2_prefetch(p):
    if "h" not in PF:
        return
    p(f"""
    v_bfe_u32 v12, v1, 4, 1
    s_mov_b32 s84, {108*1024}
    v_mul_lo_u32 v12, v12, s84
    v_and_b32 v13, 15, v1
    v_lshl_add_u32 v12, v13, 7, v12
    v_lshrrev_b32 v13, 5, v1
    v_lshl_add_u32 v12, v13, 14, v12
    s_mul_i32 s84, s{g2.S_TB}, {2*108*1024}
    s_lshl_b32 s85, s{g2.S_DB}, 11
    s_add_u32 s84, s84, s85
    s_and_b32 s85, s{g2.S_W}, 3
    s_lshl_b32 s85, s85, 15
    s_add_u32 s84, s84, s85
    buffer_load_dword v14, v12, s[{g2.S_HU}:{g2.S_HU+3}], s84 offen sc1
    """)


def g2_srds(p):
    srd(p, g2.S_W2, S_WS, S_WS + 1, WS_W2P, SZ_W2P)
    srd(p, g2.S_HU, S_WS, S_WS + 1, WS_HU, SZ_HU)
    srd(p, g2.S_HQ, S_WS, S_WS + 1, WS_HQ, SZ_HQ)
    srd(p, g2.S_OUT, S_OUTP, S_OUTP + 1, 0, L * D * 2)


def g2_issue_w(p):
    for i in range(5):
        p(f"""
        s_add_u32 m0, s{g2.S_M}, {4096 + i*1024}
        s_add_u32 s{g2.S_T0}, s{g2.S_WOFF}, {i*1024}
        buffer_load_dwordx4 v3, s[{g2.S_W2}:{g2.S_W2+3}], s{g2.S_T0} offen lds
        """)


def g2_issue_h(p):
    for b in range(2):
        for a in range(2):
            p(f"""
            s_add_u32 m0, s{g2.S_M}, {(2*b+a)*1024}
            s_add_u32 s{g2.S_T0}, s{g2.S_KOFF}, {b*108*1024 + a*1024}
            buffer_load_dwordx4 v2, s[{g2.S_HU}:{g2.S_HU+3}], s{g2.S_T0} offen sc1 lds
            """)


def ffn_loader_g2(p, tag):
    p(f"s_mov_b32 s95, s{g1.S_MB}")
    g2_coords(p)
    g2_srds(p)
    g2n.loader_prefetch(p)
    stamp(p, 3)
    p("s_barrier")
    p(f"s_lshr_b32 s87, s{g2.S_TB}, 1")
    arrive_and_wait(p, tag, 95, 87)
    p("s_waitcnt vmcnt(30)\ns_barrier")
    stamp(p, 4)
    g2n.EXTRA = 1 if "h" in PF else 0
    h_l2_prefetch(p)
    g2n.loader_main(p, tag)


def build_ffn(tag="f"):
    g1.CSL, g1.STL = G1_CSL, G1_STL
    g1.FUSED = True
    g1.TAIL_PREFETCH = w2_l2_prefetch
    p = Prog()
    p(f"""
    s_cmp_ge_u32 s2, 256
    s_cbranch_scc1 L_ffn_end_{tag}
    """)
    stamp(p, 0)
    p(f"s_load_dwordx2 s[{S_OUTP}:{S_OUTP+1}], s[0:1], {KA['out']}")
    g1.g1_setup(p)
    srd(p, S_FL, S_WS, S_WS + 1, WS_FL, SZ_FL)
    stamp(p, 1)
    p(f"""
    s_cmp_ge_u32 s{g1.S_W}, 4
    s_cbranch_scc1 L_ffn_loader_{tag}
    """)
    stats_rows(p, tag)
    g1.g1_consumer(p, tag, after_init=lambda: stats_finish(p, tag))
    stamp(p, 3)
    p("s_waitcnt vmcnt(0)\ns_barrier")
    g2_coords(p)
    g2_srds(p)
    g2n.consumer_init(p)
    p("s_barrier")
    g2n.consumer_main(p, tag)
    stamp(p, 4)
    g2n.consumer_epilogue(p, tag)
    p(f"s_branch L_ffn_fin_{tag}\nL_ffn_loader_{tag}:")
    g1.g1_loader(p, tag, before_last=lambda: None)
    stats_gather(p, tag)
    p("s_barrier")
    ffn_loader_g2(p, tag)
    p(f"L_ffn_fin_{tag}:")
    if common.STAMPS:
        p("s_waitcnt vmcnt(0)")
        stamp(p, 5)
        common.STAMP_BANK = 2
        stamp_flush(p, 6, g1.S_W, 6, 7, tmpv=240)
    p(f"L_ffn_end_{tag}:\ns_endpgm")
    return p


def init_flags(p, ws_lo, ws_hi, st0, vb=8):
    srd(p, st0, ws_lo, ws_hi, WS_ST, SZ_ST)
    p(f"""
    v_lshlrev_b32 v{vb+4}, 4, v0
    v_mov_b32 v{vb}, -1
    v_mov_b32 v{vb+1}, -1
    v_mov_b32 v{vb+2}, -1
    v_mov_b32 v{vb+3}, -1
    buffer_store_dwordx4 v[{vb}:{vb+3}], v{vb+4}, s[{st0}:{st0+3}], 0 offen sc1
    s_movk_i32 s{st0+4}, 8192
    buffer_store_dwordx4 v[{vb}:{vb+3}], v{vb+4}, s[{st0}:{st0+3}], s{st0+4} offen sc1
    """)
    srd(p, st0 + 8, ws_lo, ws_hi, WS_FL, SZ_FL)
    p(f"""
    v_mov_b32 v{vb+8}, 0
    v_mov_b32 v{vb+9}, 0
    v_mov_b32 v{vb+10}, 0
    v_mov_b32 v{vb+11}, 0
    buffer_store_dwordx4 v[{vb+8}:{vb+11}], v{vb+4}, s[{st0+8}:{st0+11}], 0 offen sc1
    """)
```

```python
import common
from asmgen import Prog
from common import *
import ln1, kgen, conv, repack, ffn

LDS_F1 = max(ln1.LN_LDS, kgen.KG_LDS)
LDS_F2 = max(conv.CONV_LDS, 4 * repack.RP_LDS_WAVE)


def kgen_role(p, s_wgc):
    p(f"""
    s_load_dwordx4 s[40:43], s[0:1], {KA['A_re']}
    s_load_dwordx4 s[44:47], s[0:1], {KA['B_re']}
    s_load_dwordx4 s[48:51], s[0:1], {KA['C_re']}
    s_load_dwordx2 s[52:53], s[0:1], {KA['log_dt']}
    s_and_b32 s25, s24, 3
    s_lshr_b32 s26, s24, 2
    s_lshl_b32 s27, s{s_wgc}, 2
    s_add_u32 s27, s27, s25
    s_mul_i32 s28, s24, {kgen.TAB}
    s_waitcnt lgkmcnt(0)
    """)
    srd(p, 8, 6, 7, WS_KG, SZ_KG)
    stamp(p, 1)
    kgen.kgen_load(p, 27, 26, 40, 30)
    kgen.kgen_tables(p, 28, hook=lambda: stamp(p, 2))
    stamp(p, 3)
    kgen.kgen_mfma(p)
    p("s_cmp_eq_u32 s26, 0\ns_cbranch_scc1 L_kg_h0")
    kgen.kgen_send(p, 28)
    p("s_barrier\ns_branch L_f1_end\nL_kg_h0:\ns_barrier")
    TAB = kgen.TAB
    p(f"""
    s_add_u32 s29, s28, {4*TAB}
    s_mul_i32 s31, s27, {KROW}
    v_lshlrev_b32 v2, 4, v1
    v_add_u32 v2, s31, v2
    v_lshrrev_b32 v3, 5, v1
    v_lshlrev_b32 v3, 8, v3
    v_and_b32 v104, 15, v1
    v_lshl_add_u32 v3, v104, 4, v3
    v_bfe_u32 v104, v1, 4, 1
    v_lshl_add_u32 v3, v104, 3, v3
    v_add_u32 v3, s31, v3
    v_mov_b32 v104, 0
    v_mov_b32 v105, 0
    v_mov_b32 v106, 0
    v_mov_b32 v107, 0
    s_mov_b64 exec, 0x3fffffff
    buffer_store_dwordx4 v[104:107], v2, s[8:11], 0 offen
    s_mov_b64 exec, -1
    """)
    def emit(kind, E):
        if kind == "s0":
            p(f"buffer_store_dwordx2 v[{E}:{E+1}], v3, s[8:11], 0 offen offset:480")
        elif kind == "s1":
            p(f"s_mov_b32 exec_hi, 0\nbuffer_store_dwordx4 v[{E}:{E+3}], v2, s[8:11], 0 offen offset:{480+512}\ns_mov_b64 exec, -1")
        else:
            base = {"s2": 512, "s3a": 1024, "s3b": 1536}[kind]
            p(f"s_movk_i32 s30, {480 + 2*base}\nbuffer_store_dwordx4 v[{E}:{E+3}], v2, s[8:11], s30 offen")
    kgen.kgen_expand(p, 29, emit, 32)


def build_front1():
    p = Prog()
    p("s_cmp_ge_u32 s2, 225\ns_cbranch_scc1 L_f1_exit")
    stamp(p, 0)
    p(f"""
    s_load_dwordx2 s[6:7], s[0:1], {KA['ws']}
    s_load_dwordx2 s[4:5], s[0:1], {KA['u']}
    v_lshrrev_b32 v2, 6, v0
    v_and_b32 v1, 63, v0
    s_nop 0
    v_readfirstlane_b32 s24, v2
    s_cmp_lt_u32 s2, 64
    s_cbranch_scc1 L_f1_ln
    s_cmp_lt_u32 s2, 224
    s_cbranch_scc1 L_f1_kg
    s_waitcnt lgkmcnt(0)
    """)
    ffn.init_flags(p, 6, 7, 8)
    p("s_branch L_f1_end\nL_f1_ln:\ns_waitcnt lgkmcnt(0)")
    srd(p, 8, 4, 5, 0, L * D * 2)
    srd(p, 12, 6, 7, WS_UX, SZ_UX)
    stamp(p, 1)
    ln1.ln1_body(p, 2, 24, 8, 12, 26)
    p("s_branch L_f1_end\nL_f1_kg:\ns_sub_u32 s33, s2, 64")
    kgen_role(p, 33)
    p("L_f1_end:")
    if common.STAMPS:
        stamp(p, 4)
        p("s_waitcnt vmcnt(0)")
        stamp(p, 5)
        common.STAMP_BANK = 0
        stamp_flush(p, 6, 24, 6, 7, tmpv=120)
    p("L_f1_exit:\ns_endpgm")
    return p


def build_front2():
    p = Prog()
    p.uid = "a"
    p(f"""
    s_cmp_ge_u32 s2, 256
    s_cbranch_scc1 L_cv_end
    """)
    stamp(p, 0)
    p(f"""
    s_load_dwordx2 s[6:7], s[0:1], {KA['ws']}
    s_load_dwordx2 s[4:5], s[0:1], {KA['Dskip']}
    s_load_dwordx2 s[80:81], s[0:1], {KA['w1']}
    s_load_dwordx2 s[82:83], s[0:1], {KA['w3']}
    s_load_dwordx2 s[84:85], s[0:1], {KA['w2']}
    v_lshrrev_b32 v2, 6, v0
    v_and_b32 v1, 63, v0
    s_nop 0
    v_readfirstlane_b32 s24, v2
    s_cmp_lt_u32 s2, 160
    s_cbranch_scc1 L_f2_conv
    s_cmp_ge_u32 s24, 4
    s_cbranch_scc1 L_cv_end
    s_sub_u32 s25, s2, 160
    s_lshl_b32 s25, s25, 2
    s_add_u32 s{repack.R_U}, s25, s24
    s_mul_i32 s25, s24, {repack.RP_LDS_WAVE}
    s_waitcnt lgkmcnt(0)
    s_cmp_ge_u32 s{repack.R_U}, {repack.NUNITS}
    s_cbranch_scc1 L_cv_end
    """)
    stamp(p, 1)
    repack.repack_unit(p, "a", 6, 7, 25)
    p("s_branch L_cv_fin\nL_f2_conv:\ns_and_b32 s25, s24, 3\ns_waitcnt lgkmcnt(0)")
    srd(p, 8, 6, 7, WS_UX, SZ_UX)
    srd(p, 12, 6, 7, WS_KG, SZ_KG)
    srd(p, 16, 6, 7, WS_HQ, SZ_HQ)
    stamp(p, 1)
    conv.conv_load_ux(p, 8, 2, 24, 30)
    p(f"""
    s_cmp_ge_u32 s24, 4
    s_cbranch_scc1 L_cv_nok
    s_lshl_b32 s27, s2, 2
    s_add_u32 s27, s27, s25
    s_mul_i32 s30, s27, {KROW}
    s_mul_i32 s31, s25, {conv.KLS}
    s_add_u32 s31, s31, {conv.KL}
    """)
    for n in range(5):
        p(f"""
        s_add_u32 m0, s31, {n*1024}
        s_nop 0
        buffer_load_dwordx4 v2, s[12:15], s30 offen lds
        s_add_u32 s30, s30, 1024
        """)
    p(f"""
    s_lshl_b32 s30, s27, 1
    v_mov_b32 v26, s30
    global_load_ushort v30, v26, s[4:5]
    L_cv_nok:
    """)
    conv.conv_zero_pads(p)
    p("s_waitcnt vmcnt(0) lgkmcnt(0)\ns_barrier")
    stamp(p, 2)
    conv.conv_build_copies(p, 24, 30)
    p("s_waitcnt lgkmcnt(0)\ns_barrier")
    stamp(p, 3)
    p("s_cmp_ge_u32 s24, 4\ns_cbranch_scc1 L_cv_idle\nv_lshlrev_b32 v30, 16, v30")
    conv.conv_main(p, 25, 30, "a")
    stamp(p, 4)
    conv.conv_epilogue1(p, 25, 30, 30)
    p("L_cv_idle:\ns_waitcnt lgkmcnt(0)\ns_barrier")
    conv.conv_epilogue2(p, 16, 2, 24, 30)
    p("L_cv_fin:")
    if common.STAMPS:
        p("s_waitcnt vmcnt(0)")
        stamp(p, 5)
        common.STAMP_BANK = 1
        stamp_flush(p, 6, 24, 6, 7, tmpv=240)
    p("L_cv_end:\ns_endpgm")
    return p
```

```python
import common
from asmgen import Prog
from common import *

WB = 14 * 1024
HROW = 1152
KS1 = WB + 8 * HROW
STAGE1 = 2 * KS1
NSLOT1 = 3
CSL = NSLOT1 * STAGE1
STL = CSL + 1024
LDS_G1 = STL + 1024

S_HQ, S_W13, S_HU, S_CS, S_ST = 8, 12, 16, 20, 36
S_W, S_MB, S_NB, S_S0, S_SLOT, S_CNT, S_T0, S_T1, S_M, S_KH, S_KW, S_INV = 24, 25, 26, 27, 28, 29, 30, 31, 32, 33, 34, 35

DBG = set()
FUSED = False
TAIL_PREFETCH = None
ACC = 16
XW, XH, YW, YH = 128, 160, 176, 208


def acc(v, m, u):
    idx = (v * 8 + m * 4 + u) if v < 3 else 24 + m * 2 + u
    b = ACC + idx * 4
    return b


def g1_setup(p):
    p(f"""
    s_load_dwordx2 s[6:7], s[0:1], {KA['ws']}
    v_lshrrev_b32 v2, 6, v0
    v_and_b32 v1, 63, v0
    s_and_b32 s{S_T0}, s2, 7
    s_lshr_b32 s{S_T1}, s2, 3
    v_readfirstlane_b32 s{S_W}, v2
    s_lshr_b32 s{S_MB}, s{S_T0}, 2
    s_lshl_b32 s{S_MB}, s{S_MB}, 3
    s_and_b32 s{S_NB}, s{S_T1}, 7
    s_add_u32 s{S_MB}, s{S_MB}, s{S_NB}
    s_and_b32 s{S_NB}, s{S_T0}, 3
    s_lshl_b32 s{S_NB}, s{S_NB}, 2
    s_lshr_b32 s{S_T1}, s{S_T1}, 3
    s_add_u32 s{S_NB}, s{S_NB}, s{S_T1}
    s_mul_i32 s{S_S0}, s{S_NB}, 7
    s_mul_i32 s{S_T0}, s{S_NB}, 6
    s_add_u32 s{S_T0}, s{S_T0}, 12
    s_min_u32 s{S_S0}, s{S_S0}, s{S_T0}
    s_waitcnt lgkmcnt(0)
    """)
    srd(p, S_HQ, 6, 7, WS_HQ, SZ_HQ)
    srd(p, S_W13, 6, 7, WS_W13, SZ_W13)
    srd(p, S_HU, 6, 7, WS_HU, SZ_HU)
    srd(p, S_CS, 6, 7, WS_CS, SZ_CS)
    srd(p, S_ST, 6, 7, WS_ST, SZ_ST)


def g1_issue(p, half, lo=0, hi=11):
    items = []
    if half == 0:
        items += [("h", r) for r in range(8)] + [("w", n) for n in range(3)]
    else:
        items += [("w", n) for n in range(3, 14)]
    for kind, n in items[lo:hi]:
        if "nodma" in DBG:
            continue
        if kind == "h":
            p(f"""
            s_add_u32 m0, s{S_M}, {WB + n*HROW}
            s_add_u32 s{S_T0}, s{S_KH}, {n*16384}
            buffer_load_dwordx4 v2, s[{S_HQ}:{S_HQ+3}], s{S_T0} offen lds
            """)
        else:
            p(f"""
            s_add_u32 m0, s{S_M}, {n*1024}
            s_add_u32 s{S_T0}, s{S_KW}, {n*1024}
            buffer_load_dwordx4 v3, s[{S_W13}:{S_W13+3}], s{S_T0} offen lds
            """)


def g1_advance(p):
    p(f"""
    s_add_u32 s{S_KH}, s{S_KH}, {2*8*16384}
    s_add_u32 s{S_KW}, s{S_KW}, {2*221184}
    s_add_u32 s{S_M}, s{S_M}, {STAGE1}
    s_sub_u32 s{S_T1}, s{S_M}, {NSLOT1*STAGE1}
    s_cmp_ge_u32 s{S_M}, {NSLOT1*STAGE1}
    s_cselect_b32 s{S_M}, s{S_T1}, s{S_M}
    """)


def g1_loader_half(p, tag, half):
    g1_issue(p, half)
    g1_advance(p)
    g1_issue(p, half, 0, 4)
    stamp(p, 2)
    p("s_waitcnt vmcnt(4)\ns_barrier")
    g1_issue(p, half, 4, 11)
    g1_advance(p)
    if not FUSED:
        p(f"""
        s_mov_b32 s{S_T1}, {hex(STL)}
        s_mov_b32 m0, s{S_T1}
        s_lshl_b32 s{S_T0}, s{S_MB}, 10
        buffer_load_dwordx4 v4, s[{S_ST}:{S_ST+3}], s{S_T0} offen lds
        """)
    for m in range(2):
        for part in range(NCS):
            r = 16 + (m * NCS + part) * 4
            p(f"s_mov_b32 s{S_T0}, {(part*2 + m)*1728*4}\n"
              f"buffer_load_dwordx4 v[{r}:{r+3}], v5, s[{S_CS}:{S_CS+3}], s{S_T0} offen")
    g1_issue(p, half)
    g1_advance(p)
    p(f"""
    s_waitcnt vmcnt({19 if FUSED else 20})
    s_barrier
    """)
    g1_issue(p, half)
    g1_advance(p)
    p("s_waitcnt vmcnt(11)")
    for m in range(2):
        b = 16 + m * NCS * 4
        for r in range(4):
            p(f"v_add_f32 v{b+r}, v{b+r}, v{b+4+r}\nv_add_f32 v{b+8+r}, v{b+8+r}, v{b+12+r}\n"
              f"v_add_f32 v{b+r}, v{b+r}, v{b+8+r}")
    p(f"""
    v_lshlrev_b32 v6, 4, v1
    v_add_u32 v6, {CSL}, v6
    s_mov_b64 exec, 0xfffffff
    ds_write_b128 v6, v[16:19]
    ds_write_b128 v6, v[32:35] offset:448
    s_mov_b64 exec, -1
    s_mov_b32 s{S_CNT}, 2
    L_g1_ld{half}_{tag}:
    s_waitcnt vmcnt(11) lgkmcnt(0)
    s_barrier
    """)
    g1_issue(p, half)
    g1_advance(p)
    p(f"""
    s_add_u32 s{S_CNT}, s{S_CNT}, 1
    s_cmp_lt_u32 s{S_CNT}, 8
    s_cbranch_scc1 L_g1_ld{half}_{tag}
    """)
    if not FUSED:
        stamp(p, 3)
    npf = TAIL_PREFETCH(p) if TAIL_PREFETCH else 0
    p(f"""
    s_waitcnt vmcnt({11 + npf})
    s_barrier
    s_waitcnt vmcnt({npf})
    s_barrier
    """)
    if not FUSED:
        stamp(p, 4)


def g1_loader(p, tag, before_last=None):
    p(f"""
    v_lshlrev_b32 v4, 4, v1
    s_lshl_b32 s{S_T0}, s{S_MB}, 10
    v_add_u32 v2, s{S_T0}, v4
    s_lshl_b32 s{S_T0}, s{S_S0}, 11
    v_add_u32 v3, s{S_T0}, v4
    s_lshl_b32 s{S_T0}, s{S_S0}, 6
    v_add_u32 v5, s{S_T0}, v4
    s_sub_u32 s{S_CNT}, s{S_W}, 4
    s_lshr_b32 s{S_T1}, s{S_CNT}, 1
    s_mul_i32 s{S_KH}, s{S_T1}, {8*16384}
    s_mul_i32 s{S_KW}, s{S_T1}, 221184
    s_mul_i32 s{S_M}, s{S_T1}, {KS1}
    s_and_b32 s{S_CNT}, s{S_CNT}, 1
    s_cmp_eq_u32 s{S_CNT}, 0
    s_cbranch_scc0 L_g1_h1_{tag}
    """)
    g1_loader_half(p, tag, 0)
    p(f"s_branch L_g1_ldone_{tag}\nL_g1_h1_{tag}:")
    g1_loader_half(p, tag, 1)
    p(f"L_g1_ldone_{tag}:")


def g1_reads(W, H, kpar, tag):
    o = kpar * KS1
    r = []
    for u in range(4):
        va = "v6" if u < 2 else "v7"
        for hf in range(2):
            r.append((f"ds_read_b64 v[{H+4*u+2*hf}:{H+4*u+2*hf+1}], {va} offset:{o + WB + hf*4*HROW + (u&1)*128}",
                      (tag, "h", u)))
    for v in range(4):
        for m in range(2):
            if v < 3:
                t = f"ds_read_b128 v[{W+8*v+4*m}:{W+8*v+4*m+3}], v8 offset:{o + v*2048 + m*1024}"
            else:
                t = f"ds_read_b128 v[{W+8*v+4*m}:{W+8*v+4*m+3}], v9 offset:{o + 3*2048 + m*1024}"
            r.append((t, (tag, "w", v, m)))
    return r


def g1_mfmas(W, H, tag):
    out = []
    for v in range(4):
        for m in range(2):
            for u in range(4 if v < 3 else 2):
                a = acc(v, m, u)
                out.append((f"v_mfma_f32_16x16x32_bf16 v[{a}:{a+3}], v[{W+8*v+4*m}:{W+8*v+4*m+3}], "
                            f"v[{H+4*u}:{H+4*u+3}], v[{a}:{a+3}]", [(tag, "h", u), (tag, "w", v, m)]))
    return out


def step(p, q, mfmas, reads):
    ri = 0
    if "noread" in DBG:
        for t, tag in reads:
            q.q.append(tag)
        reads = []
    for text, deps in mfmas:
        if "noread" not in DBG:
            q.need(*deps)
        if "nomfma" not in DBG:
            p(text)
        if ri < len(reads):
            q.issue(*reads[ri]); ri += 1
    while ri < len(reads):
        q.issue(*reads[ri]); ri += 1


def g1_addr(p):
    p(f"""
    v_add_u32 v6, s{S_SLOT}, v2
    v_add_u32 v7, s{S_SLOT}, v3
    v_add_u32 v8, s{S_SLOT}, v4
    v_add_u32 v9, s{S_SLOT}, v5
    """)


def g1_next_slot(p):
    p(f"""
    s_add_u32 s{S_SLOT}, s{S_SLOT}, {STAGE1}
    s_sub_u32 s{S_T0}, s{S_SLOT}, {NSLOT1*STAGE1}
    s_cmp_ge_u32 s{S_SLOT}, {NSLOT1*STAGE1}
    s_cselect_b32 s{S_SLOT}, s{S_T0}, s{S_SLOT}
    """)


def g1_consumer(p, tag, after_init=None):
    q = LdsQueue(p)
    p(f"""
    v_lshrrev_b32 v10, 4, v1
    v_and_b32 v11, 15, v1
    v_mul_u32_u24 v2, {HROW}, v10
    v_lshl_add_u32 v2, v11, 3, v2
    s_and_b32 s{S_T0}, s{S_W}, 1
    s_lshl_b32 s{S_T0}, s{S_T0}, 9
    v_add_u32 v2, s{S_T0}, v2
    s_lshr_b32 s{S_T1}, s{S_W}, 1
    s_lshl_b32 s{S_M}, s{S_T1}, 8
    s_sub_u32 s{S_CNT}, 256, s{S_M}
    v_add_u32 v3, s{S_CNT}, v2
    v_add_u32 v2, s{S_M}, v2
    v_lshlrev_b32 v5, 4, v1
    s_lshl_b32 s{S_M}, s{S_T1}, 13
    v_add_u32 v4, s{S_M}, v5
    """)
    for r in range(ACC, ACC + 112):
        p(f"v_mov_b32 v{r}, 0")
    p(f"s_mov_b32 s{S_SLOT}, 0")
    g1_addr(p)
    if after_init:
        after_init()
    stamp(p, 2)
    p("s_barrier")
    for r in g1_reads(XW, XH, 0, "x"):
        q.issue(*r)
    entry = list(q.q)
    p(f"s_mov_b32 s{S_CNT}, 0\nL_g1_c_{tag}:")
    step(p, q, g1_mfmas(XW, XH, "x"), g1_reads(YW, YH, 1, "y"))
    ydeps = list(q.q)
    p("s_waitcnt lgkmcnt(0)")
    q.q = []
    g1_next_slot(p)
    p("s_barrier")
    g1_addr(p)
    step(p, q, [(t, []) for t, _ in g1_mfmas(YW, YH, "y")], g1_reads(XW, XH, 0, "x"))
    assert DBG or q.q == entry
    p(f"""
    s_add_u32 s{S_CNT}, s{S_CNT}, 1
    s_cmp_lt_u32 s{S_CNT}, 9
    s_cbranch_scc1 L_g1_c_{tag}
    """)
    if not FUSED:
        stamp(p, 3)
    step(p, q, g1_mfmas(XW, XH, "x"), g1_reads(YW, YH, 1, "y"))
    p("s_waitcnt lgkmcnt(0)")
    q.q = []
    if FUSED:
        p("s_barrier")
    for t, _ in g1_mfmas(YW, YH, "y"):
        p(t)
    stamp(p, 4) if not FUSED else None
    g1_epilogue(p, tag)


def g1_epilogue(p, tag):
    ST = 128
    R2 = 136
    C = 144
    ONE = 176
    T = 178
    O = 200
    p(f"""
    v_and_b32 v11, 15, v1
    v_lshlrev_b32 v11, 3, v11
    v_add_u32 v11, {STL}, v11
    s_and_b32 s{S_T0}, s{S_W}, 1
    s_lshl_b32 s{S_T0}, s{S_T0}, 9
    v_add_u32 v11, s{S_T0}, v11
    s_lshr_b32 s{S_T1}, s{S_W}, 1
    s_lshl_b32 s{S_M}, s{S_T1}, 8
    s_sub_u32 s{S_CNT}, 256, s{S_M}
    v_add_u32 v7, s{S_CNT}, v11
    v_add_u32 v6, s{S_M}, v11
    v_lshrrev_b32 v10, 4, v1
    v_lshlrev_b32 v10, 4, v10
    v_add_u32 v10, {CSL}, v10
    s_lshl_b32 s{S_M}, s{S_T1}, 8
    v_add_u32 v8, s{S_M}, v10
    """)
    for u in range(4):
        va = "v6" if u < 2 else "v7"
        p(f"ds_read_b64 v[{ST+2*u}:{ST+2*u+1}], {va} offset:{(u&1)*128}")
    for v in range(4):
        for m in range(2):
            r = C + (v * 2 + m) * 4
            if v < 3:
                p(f"ds_read_b128 v[{r}:{r+3}], v8 offset:{m*448 + v*64}")
            else:
                p(f"ds_read_b128 v[{r}:{r+3}], v10 offset:{m*448 + 3*64}")
    p(f"""
    v_lshlrev_b32 v12, 4, v1
    s_and_b32 s{S_T0}, s{S_W}, 1
    s_lshl_b32 s{S_T0}, s{S_T0}, 1
    s_lshl_b32 s{S_M}, s{S_MB}, 2
    s_add_u32 s{S_M}, s{S_M}, s{S_T0}
    s_add_u32 s{S_KH}, s{S_M}, s{S_T1}
    s_sub_u32 s{S_KW}, 1, s{S_T1}
    s_add_u32 s{S_KW}, s{S_KW}, s{S_M}
    s_mul_i32 s{S_KH}, s{S_KH}, 108
    s_mul_i32 s{S_KW}, s{S_KW}, 108
    s_add_u32 s{S_KH}, s{S_KH}, s{S_S0}
    s_add_u32 s{S_KW}, s{S_KW}, s{S_S0}
    s_lshl_b32 s{S_KH}, s{S_KH}, 10
    s_lshl_b32 s{S_KW}, s{S_KW}, 10
    s_lshl_b32 s{S_SLOT}, s{S_T1}, 12
    s_cmp_ge_u32 s{S_NB}, 12
    s_cselect_b32 s{S_INV}, s{S_T1}, 0
    s_lshl_b32 s{S_INV}, s{S_INV}, 30
    v_mov_b32 v{ONE}, 1.0
    v_mov_b32 v{ONE+1}, 1.0
    s_waitcnt lgkmcnt(0)
    """)
    for u in range(4):
        m, r = ST + 2 * u, ST + 2 * u + 1
        p(f"""
        v_mul_f32 v{R2+2*u}, v{r}, v{r}
        v_mul_f32 v{r}, 0xbfb8aa3b, v{r}
        v_sub_f32 v{m}, 0, v{m}
        """)
    for v in range(4):
        if v < 3:
            p(f"s_add_u32 s{S_T0}, s{S_SLOT}, {v*1024}")
        else:
            p(f"s_movk_i32 s{S_T0}, {3*1024}")
        if v == 2:
            p(f"s_add_u32 s{S_T0}, s{S_T0}, s{S_INV}")
        for up in range(2 if v < 3 else 1):
            o = O + 4 * up
            for uu in range(2):
                u = 2 * up + uu
                g, h = acc(v, 0, u), acc(v, 1, u)
                c1, c3 = C + (v * 2) * 4, C + (v * 2 + 1) * 4
                st = ST + 2 * u
                for k in range(2):
                    a, b, z, n = T + 2 * k, T + 4 + 2 * k, T + 8 + 2 * k, T + 12 + 2 * k
                    p(f"""
                    v_pk_fma_f32 v[{a}:{a+1}], v[{c1+2*k}:{c1+2*k+1}], v[{st}:{st+1}], v[{g+2*k}:{g+2*k+1}] op_sel:[0,0,0] op_sel_hi:[1,0,1]
                    v_pk_fma_f32 v[{b}:{b+1}], v[{c3+2*k}:{c3+2*k+1}], v[{st}:{st+1}], v[{h+2*k}:{h+2*k+1}] op_sel:[0,0,0] op_sel_hi:[1,0,1]
                    v_pk_mul_f32 v[{z}:{z+1}], v[{a}:{a+1}], v[{st}:{st+1}] op_sel:[0,1] op_sel_hi:[1,1]
                    v_pk_mul_f32 v[{n}:{n+1}], v[{a}:{a+1}], v[{b}:{b+1}]
                    """)
                for k in range(2):
                    z = T + 8 + 2 * k
                    p(f"v_exp_f32 v{z}, v{z}\nv_exp_f32 v{z+1}, v{z+1}")
                for k in range(2):
                    z, n = T + 8 + 2 * k, T + 12 + 2 * k
                    p(f"""
                    v_pk_mul_f32 v[{n}:{n+1}], v[{n}:{n+1}], v[{R2+2*u}:{R2+2*u+1}] op_sel:[0,0] op_sel_hi:[1,0]
                    v_pk_add_f32 v[{z}:{z+1}], v[{z}:{z+1}], v[{ONE}:{ONE+1}]
                    """)
                for k in range(2):
                    z = T + 8 + 2 * k
                    p(f"v_rcp_f32 v{z}, v{z}\nv_rcp_f32 v{z+1}, v{z+1}")
                for k in range(2):
                    z, n = T + 8 + 2 * k, T + 12 + 2 * k
                    p(f"v_pk_mul_f32 v[{n}:{n+1}], v[{n}:{n+1}], v[{z}:{z+1}]")
                for k in range(2):
                    n = T + 12 + 2 * k
                    p(f"v_cvt_pk_bf16_f32 v{o+2*uu+k}, v{n}, v{n+1}")
            base = S_KH if up == 0 else S_KW
            p(f"""
            s_add_u32 s{S_M}, s{base}, s{S_T0}
            buffer_store_dwordx4 v[{o}:{o+3}], v12, s[{S_HU}:{S_HU+3}], s{S_M} offen sc1
            """)


def build_g1(tag="a"):
    p = Prog()
    p(f"""
    s_cmp_ge_u32 s2, 256
    s_cbranch_scc1 L_g1_end_{tag}
    """)
    stamp(p, 0)
    g1_setup(p)
    stamp(p, 1)
    p(f"""
    s_cmp_ge_u32 s{S_W}, 4
    s_cbranch_scc1 L_g1_loader_{tag}
    """)
    g1_consumer(p, tag)
    p(f"s_branch L_g1_fin_{tag}\nL_g1_loader_{tag}:")
    g1_loader(p, tag)
    p(f"L_g1_fin_{tag}:")
    if common.STAMPS:
        p("s_waitcnt vmcnt(0)")
        stamp(p, 5)
        stamp_flush(p, 6, S_W, 6, 7, tmpv=240)
    p(f"L_g1_end_{tag}:\ns_endpgm")
    return p
```

```python
import common
from asmgen import Prog
from common import *

KS = 5120
STAGE = 4 * KS
NSLOT = 7
LDS_G2 = NSLOT * STAGE
R = 6
HSC = "sc1"
DBG = set()
LOOP = True
EXTRA = 0

S_W2, S_HU, S_HQ, S_OUT = 8, 12, 16, 20
S_W, S_TB, S_DB, S_SLOT, S_CNT, S_T0, S_T1, S_KOFF, S_WOFF, S_M = 24, 25, 26, 27, 28, 29, 30, 31, 32, 33

ACC = 16
XA, YA = 56, 76
HR = 96
RES = 200
TMP = 210


def acc(h, j):
    return ACC + (h * 5 + j) * 4


def issue_w(p):
    for i in range(5):
        p(f"""
        s_add_u32 m0, s{S_M}, {i*1024}
        s_add_u32 s{S_T0}, s{S_WOFF}, {i*1024}
        buffer_load_dwordx4 v3, s[{S_W2}:{S_W2+3}], s{S_T0} offen lds
        """)


def adv_w(p):
    p(f"""
    s_add_u32 s{S_WOFF}, s{S_WOFF}, {4*40960}
    s_add_u32 s{S_M}, s{S_M}, {STAGE}
    s_sub_u32 s{S_T0}, s{S_M}, {NSLOT*STAGE}
    s_cmp_ge_u32 s{S_M}, {NSLOT*STAGE}
    s_cselect_b32 s{S_M}, s{S_T0}, s{S_M}
    """)


def loader_prefetch(p):
    p(f"""
    s_mul_i32 s{S_T0}, s{S_DB}, {5*1024}
    v_lshlrev_b32 v3, 4, v1
    v_add_u32 v3, s{S_T0}, v3
    s_sub_u32 s{S_CNT}, s{S_W}, 4
    s_mul_i32 s{S_WOFF}, s{S_CNT}, 40960
    s_mul_i32 s{S_M}, s{S_CNT}, {KS}
    """)
    for s in range(NSLOT):
        issue_w(p)
        adv_w(p)


def loader_main(p, tag):
    p(f"s_waitcnt vmcnt({25 + EXTRA})\ns_barrier")
    p(f"s_mov_b32 s{S_CNT}, 1\nL_g2n_ld_{tag}:\ns_waitcnt vmcnt(20)\ns_barrier")
    issue_w(p)
    adv_w(p)
    p(f"""
    s_add_u32 s{S_CNT}, s{S_CNT}, 1
    s_cmp_lt_u32 s{S_CNT}, 8
    s_cbranch_scc1 L_g2n_ld_{tag}
    """)
    for s in range(8, 14):
        p(f"s_waitcnt vmcnt({max(0, 5*(12-s))})\ns_barrier")
    p("s_barrier\ns_barrier")


def h_loads(slot):
    r = HR + 8 * slot
    if "noh" in DBG:
        return [f"s_add_u32 s{S_KOFF}, s{S_KOFF}, 4096"]
    return [f"buffer_load_dwordx4 v[{r}:{r+3}], v5, s[{S_HU}:{S_HU+3}], s{S_KOFF} offen {HSC}",
            f"buffer_load_dwordx4 v[{r+4}:{r+7}], v5, s[{S_HU}:{S_HU+3}], s{S_KOFF} offen offset:1024 {HSC}",
            f"s_add_u32 s{S_KOFF}, s{S_KOFF}, 4096"]


def w_reads(A, sub):
    return [f"ds_read_b128 v[{A+4*j}:{A+4*j+3}], v4 offset:{sub*KS + 1024*j}" for j in range(5)]


def kstep(p, A, slot, fill, pend):
    r = HR + 8 * slot
    p(f"s_waitcnt vmcnt({pend}) lgkmcnt(0)")
    p(f"v_swap_b32 v{r+2}, v{r+4}\nv_swap_b32 v{r+3}, v{r+5}")
    fill = list(fill)
    if fill:
        p(fill.pop(0))
    else:
        p("s_nop 0")
    for j in range(5):
        for h in range(2):
            c = acc(h, j)
            p(f"v_mfma_f32_16x16x32_bf16 v[{c}:{c+3}], v[{A+4*j}:{A+4*j+3}], v[{r+4*h}:{r+4*h+3}], v[{c}:{c+3}]")
            if fill:
                p(fill.pop(0))
    for f in fill:
        p(f)


def consumer_init(p):
    p(f"""
    v_lshrrev_b32 v6, 4, v1
    v_lshlrev_b32 v2, 4, v1
    s_lshr_b32 s{S_T0}, s{S_W}, 1
    s_mul_i32 s{S_T1}, s{S_T0}, {KS}
    s_and_b32 s{S_CNT}, s{S_W}, 1
    s_lshl_b32 s{S_M}, s{S_TB}, 1
    s_add_u32 s{S_M}, s{S_M}, s{S_CNT}
    s_mul_i32 s{S_M}, s{S_M}, {108*1024}
    v_add_u32 v5, s{S_M}, v2
    v_add_u32 v2, s{S_T1}, v2
    s_lshl_b32 s{S_KOFF}, s{S_T0}, 11
    s_lshl_b32 s{S_M}, s{S_TB}, 6
    s_lshl_b32 s{S_CNT}, s{S_CNT}, 5
    s_add_u32 s{S_M}, s{S_M}, s{S_CNT}
    s_lshl_b32 s{S_T0}, s{S_T0}, 4
    s_add_u32 s{S_M}, s{S_M}, s{S_T0}
    v_and_b32 v9, 15, v1
    v_add_u32 v9, s{S_M}, v9
    s_mul_i32 s{S_T0}, s{S_DB}, 20
    v_add_u32 v10, s{S_T0}, v6
    v_lshlrev_b32 v10, 14, v10
    v_lshl_add_u32 v10, v9, 3, v10
    """)
    for j in range(5):
        p(f"s_mov_b32 s{S_T0}, {j*4*16384}\n"
          f"buffer_load_dwordx2 v[{RES+2*j}:{RES+2*j+1}], v10, s[{S_HQ}:{S_HQ+3}], s{S_T0} offen")
    p(f"""
    s_movk_i32 s{S_T0}, 1280
    v_mul_lo_u32 v11, v9, s{S_T0}
    s_mul_i32 s{S_T0}, s{S_DB}, 160
    v_lshl_add_u32 v11, v6, 3, v11
    v_add_u32 v11, s{S_T0}, v11
    """)
    for r in range(ACC, ACC + 40):
        p(f"v_mov_b32 v{r}, 0")


def next_slot(p):
    p(f"""
    s_add_u32 s{S_SLOT}, s{S_SLOT}, {STAGE}
    s_sub_u32 s{S_T0}, s{S_SLOT}, {NSLOT*STAGE}
    s_cmp_ge_u32 s{S_SLOT}, {NSLOT*STAGE}
    s_cselect_b32 s{S_SLOT}, s{S_T0}, s{S_SLOT}
    """)


def stage(p, q0, loads, pends, last=False):
    p("s_barrier")
    if last:
        kstep(p, XA, q0 % R, [], pends[0])
        return
    kstep(p, XA, q0 % R, w_reads(YA, 2), pends[0])
    if loads[0]:
        for x in h_loads(q0 % R):
            p(x)
    next_slot(p)
    p(f"v_add_u32 v4, s{S_SLOT}, v2")
    kstep(p, YA, (q0 + 1) % R, w_reads(XA, 0), pends[1])
    if loads[1]:
        for x in h_loads((q0 + 1) % R):
            p(x)


def consumer_main(p, tag):
    NQ = 27
    for q in range(R):
        for x in h_loads(q):
            p(x)
    p(f"s_mov_b32 s{S_SLOT}, 0\nv_mov_b32 v4, v2")
    for r in w_reads(XA, 0):
        p(r)
    passes = max(0, (NQ - R) // R) if LOOP else 0
    steady = 2 * (R - 1)
    if passes:
        p(f"s_mov_b32 s{S_CNT}, 0\nL_g2n_c_{tag}:")
        for s in range(R // 2):
            stage(p, 2 * s, (True, True), (steady, steady))
        p(f"""
        s_add_u32 s{S_CNT}, s{S_CNT}, 1
        s_cmp_lt_u32 s{S_CNT}, {passes}
        s_cbranch_scc1 L_g2n_c_{tag}
        """)
    q = passes * R
    issued = q + R
    while q < NQ:
        if q == NQ - 1:
            stage(p, q, (False, False), (0, 0), last=True)
            break
        l0, l1 = q + R < NQ, q + 1 + R < NQ
        p0 = 2 * (issued - q - 1)
        i1 = issued + (1 if l0 else 0)
        p1 = 2 * (i1 - (q + 1) - 1)
        stage(p, q, (l0, l1), (p0, p1))
        issued = i1 + (1 if l1 else 0)
        q += 2


def consumer_epilogue(p, tag):
    p(f"""
    s_barrier
    s_lshr_b32 s{S_T0}, s{S_W}, 1
    s_mul_i32 s{S_T1}, s{S_W}, 5120
    v_lshlrev_b32 v4, 4, v1
    v_add_u32 v5, s{S_T1}, v4
    s_xor_b32 s{S_M}, s{S_W}, 2
    s_mul_i32 s{S_M}, s{S_M}, 5120
    v_add_u32 v4, s{S_M}, v4
    s_cmp_eq_u32 s{S_T0}, 0
    s_cbranch_scc0 L_g2n_send0_{tag}
    """)
    for j in range(5):
        c = acc(1, j)
        p(f"ds_write_b128 v5, v[{c}:{c+3}] offset:{j*1024}")
    p(f"s_branch L_g2n_sent_{tag}\nL_g2n_send0_{tag}:")
    for j in range(5):
        c = acc(0, j)
        p(f"ds_write_b128 v5, v[{c}:{c+3}] offset:{j*1024}")
    for j in range(5):
        for r in range(4):
            p(f"v_mov_b32 v{ACC + j*4 + r}, v{ACC + 20 + j*4 + r}")
    p(f"""
    L_g2n_sent_{tag}:
    s_waitcnt lgkmcnt(0)
    s_barrier
    """)
    for j in range(5):
        p(f"ds_read_b128 v[{XA+4*j}:{XA+4*j+3}], v4 offset:{j*1024}")
    p("s_waitcnt vmcnt(0)")
    for j in range(5):
        a, x, t = ACC + 4 * j, XA + 4 * j, TMP
        p(f"""
        s_waitcnt lgkmcnt({4-j})
        v_pk_add_f32 v[{a}:{a+1}], v[{a}:{a+1}], v[{x}:{x+1}]
        v_pk_add_f32 v[{a+2}:{a+3}], v[{a+2}:{a+3}], v[{x+2}:{x+3}]
        v_cvt_pk_bf16_f32 v{t}, v{a}, v{a+1}
        v_cvt_pk_bf16_f32 v{t+1}, v{a+2}, v{a+3}
        v_lshlrev_b32 v{x}, 16, v{RES+2*j}
        v_and_b32 v{x+1}, 0xffff0000, v{RES+2*j}
        v_lshlrev_b32 v{x+2}, 16, v{RES+2*j+1}
        v_and_b32 v{x+3}, 0xffff0000, v{RES+2*j+1}
        v_lshlrev_b32 v{a}, 16, v{t}
        v_and_b32 v{a+1}, 0xffff0000, v{t}
        v_lshlrev_b32 v{a+2}, 16, v{t+1}
        v_and_b32 v{a+3}, 0xffff0000, v{t+1}
        v_pk_add_f32 v[{a}:{a+1}], v[{a}:{a+1}], v[{x}:{x+1}]
        v_pk_add_f32 v[{a+2}:{a+3}], v[{a+2}:{a+3}], v[{x+2}:{x+3}]
        v_cvt_pk_bf16_f32 v{RES+2*j}, v{a}, v{a+1}
        v_cvt_pk_bf16_f32 v{RES+2*j+1}, v{a+2}, v{a+3}
        buffer_store_dwordx2 v[{RES+2*j}:{RES+2*j+1}], v11, s[{S_OUT}:{S_OUT+3}], 0 offen offset:{32*j}
        """)
```
